```python
import torch

def _softmax(x, axis=-1):
    return torch.softmax(x, dim=axis)
def _gelu(x):
    return torch.nn.functional.gelu(x, approximate="tanh")
def _silu(x):
    return torch.nn.functional.silu(x)
def _sigmoid(x):
    return torch.sigmoid(x)
def _layernorm(x, axis=-1, eps=1e-5):
    m = x.mean(dim=axis, keepdim=True)
    v = x.var(dim=axis, keepdim=True, unbiased=False)
    return (x - m) / torch.sqrt(v + eps)
def _scatter_add(tgt, idx, src, axis=0):
    return tgt.clone().index_add_(axis, idx, src)
def _segment_sum(src, seg, n):
    out = torch.zeros((n,) + src.shape[1:], dtype=src.dtype)
    return out.index_add_(0, seg, src)
def _pad(x, pw):
    flat = tuple(v for pair in reversed(pw) for v in pair)
    return torch.nn.functional.pad(x, flat)

kernel_name = 'gated_mix__mha_block__dense_activation_squared_relu__prompt'

def setup_inputs():

    _w = (lambda a: (lambda t: t.to(torch.bfloat16) if t.is_floating_point() else t)(torch.as_tensor(a)))
    def _A_setup():
        B, S, D, H = 1, 2048, 640, 32
        return {
            "x": _w((lambda *s: torch.randn(*s, dtype=torch.bfloat16) * 0.05)(B, S, D)),
            "wqkv": _w((lambda *s: torch.randn(*s, dtype=torch.bfloat16) * 0.8)(D, 3 * D)),
            "wo": _w((lambda *s: torch.randn(*s, dtype=torch.bfloat16) * 0.1)(D, D)),
        }
    _A_in = _A_setup()

    def _B_setup():
        B, S, D, F = 1, 2048, 640, 1536
        return {
            "x": _w((lambda *s: torch.randn(*s, dtype=torch.bfloat16) * 0.05)(B, S, D)),
            "w1": _w((lambda *s: torch.randn(*s, dtype=torch.bfloat16) * 0.1)(D, F)),
            "b1": _w((lambda *s: torch.randn(*s, dtype=torch.bfloat16) * 0.1)(F)),
            "w2": _w((lambda *s: torch.randn(*s, dtype=torch.bfloat16) * 0.1)(F, D)),
            "b2": _w((lambda *s: torch.randn(*s, dtype=torch.bfloat16) * 0.05)(D)),
        }
    _B_in = _B_setup()

    return {
        "A_x": _A_in["x"],
        "A_wqkv": _A_in["wqkv"],
        "A_wo": _A_in["wo"],
        "B_x": _B_in["x"],
        "B_w1": _B_in["w1"],
        "B_b1": _B_in["b1"],
        "B_w2": _B_in["w2"],
        "B_b2": _B_in["b2"],
        "gate_w": _w((lambda *s: torch.randn(*s, dtype=torch.bfloat16) * 0.05)(640) * 16.0),
    }

def reference(A_x, A_wqkv, A_wo, B_x, B_w1, B_b1, B_w2, B_b2, gate_w):
    def _A_ref(x, wqkv, wo):
        B, S, D = x.shape
        H = 32
        Dh = D // H
        qkv = (lambda x, *d: x.permute(*d))((x @ wqkv).reshape(B, S, 3, H, Dh), 2, 0, 3, 1, 4)
        q, k, v = qkv[0], qkv[1], qkv[2]
        scores = torch.einsum("bhqd,bhkd->bhqk", q, k) * (Dh ** -0.5)
        p = _softmax(scores, axis=-1)
        o = torch.einsum("bhqk,bhkd->bhqd", p, v)
        return (lambda x, *d: x.permute(*d))(o, 0, 2, 1, 3).reshape(B, S, D) @ wo

    def _B_ref(x, w1, b1, w2, b2):
        h = torch.einsum("bsd,df->bsf", x, w1) + b1
        zero = torch.zeros_like(h)
        r = torch.where(h > zero, h, zero)
        h = r * r
        out = torch.einsum("bsf,fd->bsd", h, w2) + b2
        return out

    x = A_x
    g = _sigmoid((x * gate_w).sum(-1, keepdims=True))
    a = _A_ref(x, A_wqkv, A_wo)
    b = _B_ref(x, B_w1, B_b1, B_w2, B_b2)
    return g * a + (1 - g) * b
```

```python
S, D, H, DH, F = 2048, 640, 32, 20, 1536
KA = dict(ax=0, wqkv=8, wo=16, bx=24, w1=32, b1=40, w2=48, b2=56, gw=64, out=72, dbg=80, ws=88)
SZ = dict(ax=S*D*2, wqkv=D*3*D*2, wo=D*D*2, bx=S*D*2, w1=D*F*2, b1=F*2, w2=F*D*2, b2=D*2, gw=D*2, out=S*D*2, dbg=256, ws=268435456)
QI_TS = 1280
QI_HS = 64 * QI_TS
WS_QI = 0
KV_TS = 2624
KV_HS = 64 * KV_TS
WS_KV = 0x300000
WS_H = 0x900000
WS_O = 0xF00000
WS_G = 0x1200000
WS_B = 0x1300000
WS_FLAG = 0x1900000
QSCALE = (20 ** -0.5) * 1.4426950408889634

def v(i): return f"v{i}"
def vr(i, n): return f"v[{i}:{i+n-1}]"
def s(i): return f"s{i}"
def sr(i, n): return f"s[{i}:{i+n-1}]"
import struct
def f32hex(x): return "0x%08x" % struct.unpack("<I", struct.pack("<f", x))[0]

class Gen:
    def __init__(self):
        self.out = []
    def __call__(self, line=""):
        for l in line.split("\n"):
            l = l.strip()
            if l: self.out.append("  " + l)
    def c(self, text): self.out.append("  ; " + text)
    def label(self, name): self.out.append(name + ":")
    def raw(self, text): self.out.append(text)
    def text(self): return "\n".join(self.out) + "\n"
    def srd(self, dst, key, tmp=None):
        self(f"s_load_dwordx2 {sr(dst,2)}, s[0:1], {KA[key]}")
    def srd_fin(self, dst, key):
        self(f"s_mov_b32 {s(dst+2)}, {SZ[key]}")
        self(f"s_mov_b32 {s(dst+3)}, 0x20000")
    def kernel_start(self, name):
        self.raw(f".globl {name}\n.p2align 8\n.type {name},@function\n{name}:")
    def kernel_end(self, name, vgpr, sgpr=96, agpr=0):
        acc = (vgpr + 3) // 4 * 4
        self.raw(f""".section .rodata,"a"
.p2align 6
.amdhsa_kernel {name}
  .amdhsa_next_free_vgpr {acc + agpr if agpr else vgpr}
  .amdhsa_next_free_sgpr {sgpr}
  .amdhsa_accum_offset {acc}
  .amdhsa_group_segment_fixed_size 0
  .amdhsa_kernarg_size 96
  .amdhsa_user_sgpr_count 2
  .amdhsa_user_sgpr_kernarg_segment_ptr 1
  .amdhsa_system_sgpr_workgroup_id_x 1
.end_amdhsa_kernel
.text""")
```

```python
from common import *

SLOT = 8 * KV_TS
NSLOT = 3
LDS_FLAG = NSLOT * SLOT
ATT_LDS = LDS_FLAG + 64

def gen_att(g, name="att_kernel", standalone=True, idbase=0, sched=None, timing=False):
    SWS, SX, SG = 4, 8, 12
    s_head, s_qb, s_w, s_qg, s_kh, s_t0, s_t1, s_t2 = 16, 17, 18, 19, 20, 21, 22, 23
    s_kvoff, s_m0, s_c, s_dlt, s_slot, s_fb, s_id = 24, 25, 26, 27, 28, 29, 30
    s_dslot = 31
    v_lane = 1; T = [2, 3, 4, 5, 6, 7, 8, 9]
    Qm = [10, 14]; Qr = [18, 20]
    Km, Kr, V0, V1 = 22, 26, 28, 32
    P = [36, 44]; Sx = [52, 68]; O = [84, 100]
    aK, aR, aV, vdma = 116, 117, 118, 119
    M = [120, 121]
    vtok = 122
    NV = 128
    L = lambda x: f"{name}_{x}"
    if standalone:
        g.kernel_start(name)
        g(f"s_cmp_ge_u32 s2, 256\ns_cbranch_scc1 {L('exit')}")
    g(f"s_sub_u32 {s(s_id)}, s2, {idbase}" if idbase else f"s_mov_b32 {s(s_id)}, s2")
    def stamp(k):
        if timing: g(f"s_memtime s[{40+4*k}:{41+4*k}]\ns_memrealtime s[{42+4*k}:{43+4*k}]\ns_waitcnt lgkmcnt(0)")
    stamp(0)
    g.srd(SWS, "ws"); g.srd(SX, "ax"); g.srd(SG, "gw")
    g(f"""s_and_b32 {s(s_t0)}, {s(s_id)}, 7
    s_lshl_b32 {s(s_t0)}, {s(s_t0)}, 2
    s_bfe_u32 {s(s_t1)}, {s(s_id)}, 0x20003
    s_add_u32 {s(s_head)}, {s(s_t0)}, {s(s_t1)}
    s_lshr_b32 {s(s_qb)}, {s(s_id)}, 5
    v_lshrrev_b32 {v(T[0])}, 6, v0
    v_and_b32 {v(v_lane)}, 63, v0
    v_readfirstlane_b32 {s(s_w)}, {v(T[0])}
    s_mov_b32 {s(s_fb)}, 0
    s_nop 2
    s_and_b32 {s(s_qg)}, {s(s_w)}, 3
    s_lshr_b32 {s(s_kh)}, {s(s_w)}, 2
    s_mul_i32 {s(s_kvoff)}, {s(s_head)}, {KV_HS}
    s_mul_i32 {s(s_t0)}, {s(s_w)}, {KV_TS}
    s_add_u32 {s(s_kvoff)}, {s(s_kvoff)}, {s(s_t0)}
    s_add_u32 {s(s_kvoff)}, {s(s_kvoff)}, {WS_KV}
    s_mov_b32 {s(s_m0)}, {s(s_t0)}
    v_lshlrev_b32 {v(vdma)}, 4, {v(v_lane)}
    s_waitcnt lgkmcnt(0)""")
    g.srd_fin(SWS, "ws"); g.srd_fin(SX, "ax"); g.srd_fin(SG, "gw")

    def dma(s_goff, s_lds):
        g(f"""s_mov_b32 m0, {s(s_lds)}
        s_nop 0
        buffer_load_dwordx4 {v(vdma)}, {sr(SWS,4)}, {s(s_goff)} offen lds
        buffer_load_dwordx4 {v(vdma)}, {sr(SWS,4)}, {s(s_goff)} offen offset:1024 lds
        s_mov_b32 exec_hi, 0xf
        buffer_load_dwordx4 {v(vdma)}, {sr(SWS,4)}, {s(s_goff)} offen offset:2048 lds
        s_mov_b32 exec_hi, -1""")
    def dma_first2():
        g(f"s_mov_b32 {s(s_t0)}, {s(s_kvoff)}\ns_mov_b32 {s(s_t1)}, {s(s_m0)}")
        dma(s_t0, s_t1)
        g(f"s_add_u32 {s(s_t0)}, {s(s_t0)}, {SLOT}\ns_add_u32 {s(s_t1)}, {s(s_t1)}, {SLOT}")
        dma(s_t0, s_t1)
    dma_first2()
    g(f"""s_mul_i32 {s(s_t0)}, {s(s_head)}, {QI_HS}
    s_lshl_b32 {s(s_t1)}, {s(s_qb)}, 3
    s_lshl_b32 {s(s_t2)}, {s(s_qg)}, 1
    s_add_u32 {s(s_t1)}, {s(s_t1)}, {s(s_t2)}
    s_mul_i32 {s(s_t1)}, {s(s_t1)}, {QI_TS}
    s_add_u32 {s(s_t0)}, {s(s_t0)}, {s(s_t1)}
    s_add_u32 {s(s_t0)}, {s(s_t0)}, {WS_QI}
    v_lshlrev_b32 {v(T[0])}, 3, {v(v_lane)}""")
    for j in range(2):
        g(f"v_mov_b32 {v(Qr[j])}, 0\nv_mov_b32 {v(Qr[j]+1)}, 0")
    for j in range(2):
        g(f"buffer_load_dwordx4 {vr(Qm[j],4)}, {v(vdma)}, {sr(SWS,4)}, {s(s_t0)} offen offset:{j*QI_TS}")
    g("s_mov_b32 exec_hi, 0")
    for j in range(2):
        g(f"buffer_load_dwordx2 {vr(Qr[j],2)}, {v(T[0])}, {sr(SWS,4)}, {s(s_t0)} offen offset:{j*QI_TS+1024}")
    g("s_mov_b32 exec_hi, -1")
    gx, gw_ = Sx[0], Sx[0] + 8
    g(f"""s_lshl_b32 {s(s_t0)}, {s(s_qb)}, 8
    s_lshl_b32 {s(s_t1)}, {s(s_head)}, 3
    s_add_u32 {s(s_t0)}, {s(s_t0)}, {s(s_t1)}
    s_add_u32 {s(s_t0)}, {s(s_t0)}, {s(s_w)}               ; row
    s_mul_i32 {s(s_t1)}, {s(s_t0)}, 1280
    s_lshl_b32 {s(s_t2)}, {s(s_t0)}, 2
    s_add_u32 {s(s_t2)}, {s(s_t2)}, {WS_G}
    v_lshlrev_b32 {v(T[1])}, 5, {v(v_lane)}""")
    for i in range(16): g(f"v_mov_b32 {v(gx+i)}, 0")
    g(f"""s_mov_b32 exec_hi, 0xff
    buffer_load_dwordx4 {vr(gx,4)}, {v(T[1])}, {sr(SX,4)}, {s(s_t1)} offen
    buffer_load_dwordx4 {vr(gx+4,4)}, {v(T[1])}, {sr(SX,4)}, {s(s_t1)} offen offset:16
    buffer_load_dwordx4 {vr(gw_,4)}, {v(T[1])}, {sr(SG,4)}, 0 offen
    buffer_load_dwordx4 {vr(gw_+4,4)}, {v(T[1])}, {sr(SG,4)}, 0 offen offset:16
    s_mov_b32 exec_hi, -1""")
    g(f"""s_mul_i32 {s(s_t0)}, {s(s_kh)}, {4*KV_TS}
    v_lshlrev_b32 {v(aK)}, 4, {v(v_lane)}
    v_add_u32 {v(aK)}, {s(s_t0)}, {v(aK)}
    v_and_b32 {v(T[0])}, 31, {v(v_lane)}                    ; d / key
    v_lshrrev_b32 {v(T[1])}, 5, {v(v_lane)}                 ; h
    v_lshlrev_b32 {v(aR)}, 3, {v(T[0])}
    v_add_u32 {v(aR)}, 1024, {v(aR)}
    v_cmp_eq_u32 vcc, 1, {v(T[1])}
    v_mov_b32 {v(T[2])}, 1600
    s_nop 0
    v_cndmask_b32 {v(aR)}, {v(aR)}, {v(T[2])}, vcc
    v_add_u32 {v(aR)}, {s(s_t0)}, {v(aR)}
    v_min_u32 {v(T[2])}, 20, {v(T[0])}
    v_cmp_le_u32 vcc, 28, {v(T[0])}
    v_mul_u32_u24 {v(T[3])}, 21, {v(T[1])}
    s_nop 0
    v_cndmask_b32 {v(T[2])}, {v(T[2])}, 4, vcc
    v_add_u32 {v(T[2])}, {v(T[2])}, {v(T[3])}
    v_lshlrev_b32 {v(aV)}, 4, {v(T[2])}
    v_add_u32 {v(aV)}, {s(s_t0)}, {v(aV)}
    v_mov_b32 {v(T[4])}, 0
    v_mov_b32 {v(T[5])}, {LDS_FLAG}
    ds_write_b32 {v(T[5])}, {v(T[4])}""")
    acc = T[6]
    g(f"s_waitcnt vmcnt(0)\nv_mov_b32 {v(acc)}, 0")
    for i in range(8): g(f"v_dot2_f32_bf16 {v(acc)}, {v(gx+i)}, {v(gw_+i)}, {v(acc)}")
    g("s_nop 3")
    for dpp in ["row_shr:1", "row_shr:2", "row_shr:4", "row_shr:8", "row_bcast:15 row_mask:0xa", "row_bcast:31 row_mask:0xc"]:
        g(f"s_nop 1\nv_add_f32_dpp {v(acc)}, {v(acc)}, {v(acc)} {dpp} bank_mask:0xf" if "row_mask" in dpp else f"s_nop 1\nv_add_f32_dpp {v(acc)}, {v(acc)}, {v(acc)} {dpp} row_mask:0xf bank_mask:0xf bound_ctrl:0")
    g(f"""v_mul_f32 {v(acc)}, {f32hex(-1.4426950408889634)}, {v(acc)}
    v_exp_f32 {v(acc)}, {v(acc)}
    s_nop 0
    v_add_f32 {v(acc)}, 1.0, {v(acc)}
    v_rcp_f32 {v(acc)}, {v(acc)}
    v_mov_b32 {v(T[7])}, 0
    s_mov_b32 exec_lo, 0
    s_mov_b32 exec_hi, 0x80000000
    buffer_store_dword {v(acc)}, {v(T[7])}, {sr(SWS,4)}, {s(s_t2)} offen
    s_mov_b64 exec, -1""")

    def qk16(dst, X): g(f"v_mfma_f32_32x32x16_bf16 {vr(Sx[dst],16)}, {vr(Km,4)}, {vr(Qm[X],4)}, 0")
    def qk8(dst, X): g(f"v_mfma_f32_32x32x8_bf16 {vr(Sx[dst],16)}, {vr(Kr,2)}, {vr(Qr[X],2)}, {vr(Sx[dst],16)}")
    def pv(X, u): g(f"v_mfma_f32_32x32x16_bf16 {vr(O[X],16)}, {vr(V0 if u == 0 else V1,4)}, {vr(P[X]+4*u,4)}, {vr(O[X],16)}")
    def ldK(toff):
        g(f"ds_read_b128 {vr(Km,4)}, {v(aK)} offset:{toff}\nds_read_b64 {vr(Kr,2)}, {v(aR)} offset:{toff}")
    def ldV(toff):
        g(f"ds_read_b128 {vr(V0,4)}, {v(aV)} offset:{toff+1280}\nds_read_b128 {vr(V1,4)}, {v(aV)} offset:{toff+1280+672}")
    def e(X, r): g(f"v_exp_f32 {v(Sx[X]+r)}, {v(Sx[X]+r)}")
    def cv(X, k): g(f"v_cvt_pk_bf16_f32 {v(P[X]+k)}, {v(Sx[X]+2*k)}, {v(Sx[X]+2*k+1)}")
    SEQ = sched or ["M1", "e0", "e1", "e2", "e3", "M2", "LK", "c0", "c1", "e4", "e5", "e6", "M3", "e7", "c2", "e8", "c3", "e9", "M4", "LV",
                    "e10", "c4", "e11", "e12", "c5", "e13", "e14", "e15", "c6", "c7"]
    def chunk_switch():
        g(f"""s_waitcnt vmcnt(0)
        s_barrier
        s_cmp_ge_u32 {s(s_c)}, 6
        s_cbranch_scc1 {L('nodma')}{chunk_switch.n}
        s_add_u32 {s(s_t0)}, {s(s_c)}, 2
        s_mul_i32 {s(s_t0)}, {s(s_t0)}, {SLOT}
        s_add_u32 {s(s_t0)}, {s(s_t0)}, {s(s_kvoff)}
        s_add_u32 {s(s_t1)}, {s(s_dslot)}, {s(s_m0)}""")
        dma(s_t0, s_t1)
        g.label(f"{L('nodma')}{chunk_switch.n}")
        chunk_switch.n += 1
        g(f"""s_add_u32 {s(s_dslot)}, {s(s_dslot)}, {SLOT}
        s_cmp_ge_u32 {s(s_dslot)}, {NSLOT*SLOT}
        s_cselect_b32 {s(s_dslot)}, 0, {s(s_dslot)}
        s_add_u32 {s(s_slot)}, {s(s_slot)}, {SLOT}
        s_cmp_ge_u32 {s(s_slot)}, {NSLOT*SLOT}
        s_cselect_b32 {s(s_slot)}, 0, {s(s_slot)}
        s_mov_b32 {s(s_dlt)}, {SLOT}
        s_cmov_b32 {s(s_dlt)}, {-(NSLOT-1)*SLOT}
        v_add_u32 {v(aK)}, {s(s_dlt)}, {v(aK)}
        v_add_u32 {v(aR)}, {s(s_dlt)}, {v(aR)}""")
    chunk_switch.n = 0
    def phase(X, i):
        Y = 1 - X
        for op in SEQ:
            if op == "M1":
                if X == 1: g("s_waitcnt lgkmcnt(2)")
                qk16(Y, Y)
            elif op == "M2": qk8(Y, Y)
            elif op == "M3":
                if X == 1: g("s_waitcnt lgkmcnt(0)")
                pv(Y, 0)
            elif op == "M4": pv(Y, 1)
            elif op == "LK":
                if X == 0:
                    if i == 3:
                        chunk_switch(); ldK(0)
                    else: ldK((i + 1) * KV_TS)
            elif op == "LV":
                if X == 0:
                    ldV(i * KV_TS)
                    if i == 3: g(f"v_add_u32 {v(aV)}, {s(s_dlt)}, {v(aV)}")
            elif op[0] == "e": e(X, int(op[1:]))
            elif op[0] == "c": cv(X, int(op[1:]))

    g.label(L('restart'))
    for X in range(2):
        for r in range(16): g(f"v_mov_b32 {v(O[X]+r)}, 0")
    for r in range(8): g(f"v_mov_b32 {v(P[1]+r)}, 0")
    for r in range(8): g(f"v_mov_b32 {v(V0+r)}, 0")
    g(f"""s_mov_b32 {s(s_c)}, 0
    s_mov_b32 {s(s_slot)}, 0
    s_mov_b32 {s(s_dslot)}, {2*SLOT}
    s_waitcnt vmcnt(3) lgkmcnt(0)
    s_barrier""")
    stamp(1)
    ldK(0)
    g("s_waitcnt lgkmcnt(0)")
    qk16(0, 0); qk8(0, 0)
    g("s_nop 7\ns_nop 3")
    g.label(L('loop'))
    for i in range(4):
        phase(0, i); phase(1, i)
    g(f"""s_add_u32 {s(s_c)}, {s(s_c)}, 1
    s_cmp_lt_u32 {s(s_c)}, 8
    s_cbranch_scc1 {L('loop')}""")
    stamp(2)
    g("s_nop 1")
    pv(1, 0); pv(1, 1)
    g("s_nop 15\ns_nop 3")
    g(f"""s_waitcnt lgkmcnt(0)
    s_barrier
    s_mul_i32 {s(s_t0)}, {s(s_w)}, 3072
    v_lshlrev_b32 {v(T[0])}, 4, {v(v_lane)}
    v_add_u32 {v(T[1])}, {s(s_t0)}, {v(T[0])}
    s_xor_b32 {s(s_t1)}, {s(s_w)}, 4
    s_mul_i32 {s(s_t1)}, {s(s_t1)}, 3072
    v_add_u32 {v(T[2])}, {s(s_t1)}, {v(T[0])}
    s_cmp_eq_u32 {s(s_kh)}, 0
    s_cbranch_scc1 {L('kh0')}""")
    for q in range(3): g(f"ds_write_b128 {v(T[1])}, {vr(O[0]+4*q,4)} offset:{q*1024}")
    for r in range(12): g(f"v_mov_b32 {v(O[0]+r)}, {v(O[1]+r)}")
    g(f"s_branch {L('sent')}")
    g.label(L('kh0'))
    for q in range(3): g(f"ds_write_b128 {v(T[1])}, {vr(O[1]+4*q,4)} offset:{q*1024}")
    g.label(L('sent'))
    R = Sx[0]
    g("s_waitcnt lgkmcnt(0)\ns_barrier")
    for q in range(3): g(f"ds_read_b128 {vr(R+4*q,4)}, {v(T[2])} offset:{q*1024}")
    g("s_waitcnt lgkmcnt(0)")
    Fo = O[0]
    for r in range(12): g(f"v_add_f32 {v(Fo+r)}, {v(Fo+r)}, {v(R+r)}")
    g(f"""v_mov_b32 {v(T[3])}, {v(Fo+8)}
    v_mov_b32 {v(T[4])}, {v(Fo+8)}
    s_nop 1
    v_permlane32_swap_b32 {v(T[3])}, {v(T[4])}
    s_nop 1
    v_rcp_f32 {v(T[5])}, {v(T[4])}
    v_mov_b32 {v(T[6])}, 0""")
    for r in range(12): g(f"v_mul_f32 {v(Fo+r)}, {v(Fo+r)}, {v(T[5])}")
    for r in range(12): g(f"v_fma_f32 {v(T[6])}, {v(Fo+r)}, 0, {v(T[6])}")
    g(f"""v_cmp_o_f32 vcc, {v(T[6])}, {v(T[6])}
    s_mov_b32 {s(s_t0)}, 0x21800000
    v_cmp_lt_f32 s[32:33], {s(s_t0)}, {v(T[4])}
    s_mov_b32 {s(s_t0)}, 0x5d800000
    v_cmp_gt_f32 s[34:35], {s(s_t0)}, {v(T[4])}
    s_nop 1
    s_and_b64 vcc, vcc, s[32:33]
    s_and_b64 vcc, vcc, s[34:35]
    s_cmp_eq_u64 vcc, -1
    s_cbranch_scc1 {L('ok')}
    v_mov_b32 {v(T[6])}, 1
    v_mov_b32 {v(T[7])}, {LDS_FLAG}
    ds_write_b32 {v(T[7])}, {v(T[6])}""")
    g.label(L('ok'))
    g(f"""v_mov_b32 {v(T[7])}, {LDS_FLAG}
    s_waitcnt lgkmcnt(0)
    s_barrier
    ds_read_b32 {v(T[6])}, {v(T[7])}
    s_waitcnt lgkmcnt(0)
    v_readfirstlane_b32 {s(s_t0)}, {v(T[6])}
    s_nop 3
    s_xor_b32 {s(s_t1)}, {s(s_fb)}, 1
    s_and_b32 {s(s_t0)}, {s(s_t0)}, {s(s_t1)}
    s_cmp_lg_u32 {s(s_t0)}, 0
    s_cbranch_scc1 {L('fallback')}""")
    g(f"""s_lshl_b32 {s(s_t0)}, {s(s_qb)}, 8
    s_lshl_b32 {s(s_t1)}, {s(s_qg)}, 6
    s_add_u32 {s(s_t0)}, {s(s_t0)}, {s(s_t1)}
    s_lshl_b32 {s(s_t1)}, {s(s_kh)}, 5
    s_add_u32 {s(s_t0)}, {s(s_t0)}, {s(s_t1)}
    v_and_b32 {v(T[0])}, 31, {v(v_lane)}
    v_add_u32 {v(T[0])}, {s(s_t0)}, {v(T[0])}
    v_mul_u32_u24 {v(T[0])}, 1280, {v(T[0])}
    v_lshrrev_b32 {v(T[1])}, 5, {v(v_lane)}
    s_mul_i32 {s(s_t0)}, {s(s_head)}, 5
    v_add_u32 {v(T[1])}, {s(s_t0)}, {v(T[1])}               ; n0 = head*5 + h
    s_mov_b32 {s(s_t0)}, {WS_O}""")
    for q in range(3):
        g(f"""v_add_u32 {v(T[2])}, {2*q}, {v(T[1])}
        v_lshrrev_b32 {v(T[3])}, 2, {v(T[2])}
        v_lshl_add_u32 {v(T[4+q])}, {v(T[3])}, 5, {v(T[0])}
        v_and_b32 {v(T[3])}, 1, {v(T[2])}
        v_lshl_add_u32 {v(T[4+q])}, {v(T[3])}, 4, {v(T[4+q])}
        v_and_b32 {v(T[3])}, 2, {v(T[2])}
        v_lshl_add_u32 {v(T[4+q])}, {v(T[3])}, 2, {v(T[4+q])}""")
    for q in range(3):
        g(f"v_cvt_pk_bf16_f32 {v(R+2*q)}, {v(Fo+4*q)}, {v(Fo+4*q+1)}\nv_cvt_pk_bf16_f32 {v(R+2*q+1)}, {v(Fo+4*q+2)}, {v(Fo+4*q+3)}")
    g(f"""buffer_store_dwordx2 {vr(R,2)}, {v(T[4])}, {sr(SWS,4)}, {s(s_t0)} offen
    buffer_store_dwordx2 {vr(R+2,2)}, {v(T[5])}, {sr(SWS,4)}, {s(s_t0)} offen
    s_mov_b32 exec_hi, 0
    buffer_store_dwordx2 {vr(R+4,2)}, {v(T[6])}, {sr(SWS,4)}, {s(s_t0)} offen""")
    if timing:
        g("s_waitcnt vmcnt(0)")
        stamp(3)
        g(f"""s_mov_b64 exec, 1
        s_lshl_b32 {s(s_t0)}, {s(s_id)}, 3
        s_add_u32 {s(s_t0)}, {s(s_t0)}, {s(s_w)}
        s_lshl_b32 {s(s_t0)}, {s(s_t0)}, 5
        s_add_u32 {s(s_t0)}, {s(s_t0)}, {WS_FLAG + 0x100000}
        v_mov_b32 {v(T[0])}, 0""")
        for k in range(4):
            g(f"v_mov_b32 {v(R+2*k)}, s{40+4*k}\nv_mov_b32 {v(R+2*k+1)}, s{42+4*k}")
        g(f"""buffer_store_dwordx4 {vr(R,4)}, {v(T[0])}, {sr(SWS,4)}, {s(s_t0)} offen
        buffer_store_dwordx4 {vr(R+4,4)}, {v(T[0])}, {sr(SWS,4)}, {s(s_t0)} offen offset:16""")
    g("s_endpgm")
    g.label(L('fallback'))
    g(f"s_mov_b32 {s(s_fb)}, 1")
    def reset_addr():
        g(f"""s_mul_i32 {s(s_t0)}, {s(s_kh)}, {4*KV_TS}
        v_lshlrev_b32 {v(aK)}, 4, {v(v_lane)}
        v_add_u32 {v(aK)}, {s(s_t0)}, {v(aK)}
        v_add_u32 {v(aR)}, {(NSLOT-1)*SLOT if False else 0}, {v(aR)}""")
    back = (8 % NSLOT) * SLOT
    def rewind():
        for a in (aK, aR, aV): g(f"v_subrev_u32 {v(a)}, {back}, {v(a)}")
    rewind()
    g("s_barrier")
    dma_first2()
    for X in range(2): g(f"v_mov_b32 {v(M[X])}, 0xff800000")
    g(f"""s_mov_b32 {s(s_c)}, 0
    s_mov_b32 {s(s_slot)}, 0
    s_mov_b32 {s(s_dslot)}, {2*SLOT}
    s_waitcnt vmcnt(3)
    s_barrier""")
    g.label(L('mxloop'))
    for i in range(4):
        ldK(i * KV_TS)
        g("s_waitcnt lgkmcnt(0)")
        for X in range(2):
            qk16(X, X); qk8(X, X)
        g("s_nop 15\ns_nop 7")
        for X in range(2):
            for r in range(0, 16, 2):
                g(f"v_max3_f32 {v(M[X])}, {v(M[X])}, {v(Sx[X]+r)}, {v(Sx[X]+r+1)}")
    chunk_switch()
    g(f"""v_add_u32 {v(aV)}, {s(s_dlt)}, {v(aV)}
    s_add_u32 {s(s_c)}, {s(s_c)}, 1
    s_cmp_lt_u32 {s(s_c)}, 8
    s_cbranch_scc1 {L('mxloop')}""")
    rewind()
    for X in range(2):
        g(f"""v_mov_b32 {v(T[0])}, {v(M[X])}
        v_mov_b32 {v(T[1])}, {v(M[X])}
        s_nop 1
        v_permlane32_swap_b32 {v(T[0])}, {v(T[1])}
        s_nop 1
        v_max_f32 {v(M[X])}, {v(T[0])}, {v(T[1])}""")
    g(f"""s_lshl_b32 {s(s_t0)}, {s(s_w)}, 9
    v_lshlrev_b32 {v(T[0])}, 3, {v(v_lane)}
    v_add_u32 {v(T[1])}, {s(s_t0)}, {v(T[0])}
    s_xor_b32 {s(s_t1)}, {s(s_w)}, 4
    s_lshl_b32 {s(s_t1)}, {s(s_t1)}, 9
    v_add_u32 {v(T[2])}, {s(s_t1)}, {v(T[0])}
    s_waitcnt vmcnt(0)
    s_barrier
    ds_write_b64 {v(T[1])}, {vr(M[0],2)}
    s_waitcnt lgkmcnt(0)
    s_barrier
    ds_read_b64 {vr(T[4],2)}, {v(T[2])}
    s_waitcnt lgkmcnt(0)
    v_max_f32 {v(M[0])}, {v(M[0])}, {v(T[4])}
    v_max_f32 {v(M[1])}, {v(M[1])}, {v(T[5])}
    s_barrier""")
    g("s_mov_b32 exec_lo, 0")
    for X in range(2):
        g(f"""v_xor_b32 {v(T[0])}, 0x80000000, {v(M[X])}      ; -M
        v_and_b32 {v(T[1])}, 0xffff0000, {v(T[0])}            ; hi
        v_sub_f32 {v(T[0])}, {v(T[0])}, {v(T[1])}
        v_and_b32 {v(T[2])}, 0xffff0000, {v(T[0])}            ; mid
        v_sub_f32 {v(T[0])}, {v(T[0])}, {v(T[2])}
        v_lshrrev_b32 {v(T[1])}, 16, {v(T[1])}
        v_or_b32 {v(Qr[X])}, {v(T[1])}, {v(T[2])}
        v_lshrrev_b32 {v(Qr[X]+1)}, 16, {v(T[0])}""")
    g("s_mov_b32 exec_lo, -1")
    dma_first2()
    g(f"s_branch {L('restart')}")
    if standalone:
        g.label(L('exit'))
        g("s_endpgm")
        g.kernel_end(name, NV)
    return dict(lds=ATT_LDS)
```

```python
from common import *

def gen_ffn1(g, name="ffn1_kernel", NS=3, standalone=True):
    NCH = 10
    SLOT = 16384 + 12288
    SX, SW, SWS, SB = 4, 8, 12, 36
    s_mt, s_nt, s_w, s_t0, s_t1, s_m0x, s_m0w, s_kx, s_kw = 16, 17, 18, 19, 20, 21, 22, 23, 24
    v_lane, v_t0, v_t1, v_t2, v_t3 = 1, 2, 3, 4, 5
    v_dx0, v_dx1, v_dw0, v_dw1 = 6, 7, 8, 9
    v_ax = [10, 11, 12, 13]
    v_aw = 14; v_awh = 15
    v_axh = [94, 95, 96, 97]
    v_bias = 16
    FR = 32
    ACC = 56
    v_off = 88; v_pk = 90
    NV = 98
    L = lambda x: f"{name}_{x}"
    if standalone:
        g.kernel_start(name)
        g(f"s_cmp_ge_u32 s2, 256\ns_cbranch_scc1 {L('exit')}")
    g(f"""s_and_b32 {s(s_mt)}, s2, 15
    s_lshr_b32 {s(s_nt)}, s2, 4""")
    g.srd(SX, "ax"); g.srd(SW, "w1"); g.srd(SWS, "ws"); g.srd(SB, "b1")
    g(f"""v_lshrrev_b32 {v(v_t0)}, 6, v0
    v_and_b32 {v(v_lane)}, 63, v0
    v_readfirstlane_b32 {s(s_w)}, {v(v_t0)}""")
    g(f"""v_lshrrev_b32 {v(v_t0)}, 3, {v(v_lane)}
    v_lshrrev_b32 {v(v_t1)}, 4, {v(v_lane)}
    v_and_b32 {v(v_t2)}, 7, {v(v_lane)}
    s_lshl_b32 {s(s_t0)}, {s(s_mt)}, 7
    s_lshl_b32 {s(s_t1)}, {s(s_w)}, 4
    s_add_u32 {s(s_t0)}, {s(s_t0)}, {s(s_t1)}
    v_add_u32 {v(v_t0)}, {s(s_t0)}, {v(v_t0)}
    s_movk_i32 {s(s_t1)}, 1280
    v_mul_lo_u32 {v(v_t0)}, {v(v_t0)}, {s(s_t1)}
    v_xor_b32 {v(v_t3)}, {v(v_t2)}, {v(v_t1)}
    v_lshl_add_u32 {v(v_dx0)}, {v(v_t3)}, 4, {v(v_t0)}
    v_xor_b32 {v(v_t3)}, 4, {v(v_t3)}
    v_lshl_add_u32 {v(v_dx1)}, {v(v_t3)}, 4, {v(v_t0)}
    v_add_u32 {v(v_dx1)}, {8*1280-1024}, {v(v_dx1)}""")
    for j, dst in ((0, v_dw0), (1, v_dw1)):
        g(f"""s_mul_i32 {s(s_t0)}, {s(s_w)}, 96
        s_add_u32 {s(s_t0)}, {s(s_t0)}, {64*j}
        v_add_u32 {v(v_t0)}, {s(s_t0)}, {v(v_lane)}
        v_mul_u32_u24 {v(v_t1)}, 683, {v(v_t0)}
        v_lshrrev_b32 {v(v_t1)}, 13, {v(v_t1)}
        v_mul_u32_u24 {v(v_t2)}, 12, {v(v_t1)}
        v_sub_u32 {v(v_t2)}, {v(v_t0)}, {v(v_t2)}
        v_mul_u32_u24 {v(v_t1)}, 3072, {v(v_t1)}
        v_lshl_add_u32 {v(dst)}, {v(v_t2)}, 4, {v(v_t1)}
        s_mul_i32 {s(s_t0)}, {s(s_nt)}, 192
        s_sub_u32 {s(s_t0)}, {s(s_t0)}, {1024*j}
        v_add_u32 {v(dst)}, {s(s_t0)}, {v(dst)}""")
    g(f"""s_lshl_b32 {s(s_m0x)}, {s(s_w)}, 11
    s_mul_i32 {s(s_m0w)}, {s(s_w)}, 1536
    s_add_u32 {s(s_m0w)}, {s(s_m0w)}, 16384
    s_waitcnt lgkmcnt(0)""")
    g.srd_fin(SX, "ax"); g.srd_fin(SW, "w1"); g.srd_fin(SWS, "ws"); g.srd_fin(SB, "b1")
    def dma(c):
        slot = c % NS
        g(f"""s_add_u32 m0, {s(s_m0x)}, {slot*SLOT}
        s_mov_b32 {s(s_kx)}, {c*128}
        s_mov_b32 {s(s_kw)}, {c*64*3072}
        buffer_load_dwordx4 {v(v_dx0)}, {sr(SX,4)}, {s(s_kx)} offen lds
        buffer_load_dwordx4 {v(v_dx1)}, {sr(SX,4)}, {s(s_kx)} offen offset:1024 lds
        s_add_u32 m0, {s(s_m0w)}, {slot*SLOT}
        s_nop 0
        buffer_load_dwordx4 {v(v_dw0)}, {sr(SW,4)}, {s(s_kw)} offen lds
        s_mov_b32 exec_hi, 0
        buffer_load_dwordx4 {v(v_dw1)}, {sr(SW,4)}, {s(s_kw)} offen offset:1024 lds
        s_mov_b32 exec_hi, -1""")
    g(f"""s_lshr_b32 {s(s_t0)}, {s(s_w)}, 2
    s_lshl_b32 {s(s_t0)}, {s(s_t0)}, 6                       ; ct0*32 = (w>>2)*64
    s_mul_i32 {s(s_t1)}, {s(s_nt)}, 96
    s_add_u32 {s(s_t0)}, {s(s_t0)}, {s(s_t1)}
    s_lshl_b32 {s(s_t0)}, {s(s_t0)}, 1
    v_lshrrev_b32 {v(v_t0)}, 5, {v(v_lane)}
    v_lshlrev_b32 {v(v_t0)}, 3, {v(v_t0)}                    ; h*8 bytes""")
    for t in range(2):
        for gp in range(2):
            for ii in range(2):
                g(f"buffer_load_dwordx2 {vr(v_bias + 8*t + 4*gp + 2*ii, 2)}, {v(v_t0)}, {sr(SB,4)}, {s(s_t0)} offen offset:{(t*32 + 16*gp + 8*ii)*2}")
    for c in range(NS - 1): dma(c)
    g(f"""v_and_b32 {v(v_t0)}, 31, {v(v_lane)}
    v_lshrrev_b32 {v(v_t1)}, 5, {v(v_lane)}
    v_bfe_u32 {v(v_t2)}, {v(v_t0)}, 1, 3
    v_xor_b32 {v(v_t2)}, {v(v_t2)}, {v(v_t1)}
    v_lshlrev_b32 {v(v_t2)}, 4, {v(v_t2)}
    s_and_b32 {s(s_t0)}, {s(s_w)}, 3
    s_lshl_b32 {s(s_t0)}, {s(s_t0)}, 12
    v_lshl_add_u32 {v(v_t0)}, {v(v_t0)}, 7, {v(v_t2)}
    v_add_u32 {v(v_ax[0])}, {s(s_t0)}, {v(v_t0)}""")
    for st in range(1, 4): g(f"v_xor_b32 {v(v_ax[st])}, {32*st}, {v(v_ax[0])}")
    g(f"""v_lshrrev_b32 {v(v_t0)}, 4, {v(v_lane)}         ; G
    v_and_b32 {v(v_t1)}, 1, {v(v_t0)}                     ; colhalf
    v_lshrrev_b32 {v(v_t0)}, 1, {v(v_t0)}                 ; khalf
    v_bfe_u32 {v(v_t2)}, {v(v_lane)}, 2, 2                ; r4
    v_lshl_add_u32 {v(v_t0)}, {v(v_t0)}, 3, {v(v_t2)}     ; 8*khalf + r4
    v_mul_u32_u24 {v(v_t0)}, 192, {v(v_t0)}
    v_and_b32 {v(v_t3)}, 3, {v(v_lane)}                   ; c
    v_lshlrev_b32 {v(v_t3)}, 3, {v(v_t3)}                 ; c*8 bytes
    v_lshl_add_u32 {v(v_t3)}, {v(v_t1)}, 5, {v(v_t3)}
    v_add_u32 {v(v_t0)}, {v(v_t0)}, {v(v_t3)}
    s_lshr_b32 {s(s_t0)}, {s(s_w)}, 2
    s_lshl_b32 {s(s_t0)}, {s(s_t0)}, 7
    s_add_u32 {s(s_t0)}, {s(s_t0)}, 16384
    v_add_u32 {v(v_aw)}, {s(s_t0)}, {v(v_t0)}
    v_add_u32 {v(v_awh)}, {2*SLOT}, {v(v_aw)}""")
    for st in range(4): g(f"v_add_u32 {v(v_axh[st])}, {2*SLOT}, {v(v_ax[st])}")
    for i in range(32): g(f"v_mov_b32 {v(ACC+i)}, 0")
    g(f"s_cmp_ge_u32 {s(s_w)}, 4\ns_cbranch_scc1 {L('one')}")
    def reads(c, st, buf, nt):
        slot = c % NS
        so = (slot % 2) * SLOT
        aw = v_awh if slot >= 2 else v_aw
        ax = (v_axh if slot >= 2 else v_ax)[st]
        b = FR + buf * 12
        g(f"ds_read_b128 {vr(b,4)}, {v(ax)} offset:{so}")
        for t in range(nt):
            g(f"""ds_read_b64_tr_b16 {vr(b+4+4*t,2)}, {v(aw)} offset:{so+st*16*192+t*64}
            ds_read_b64_tr_b16 {vr(b+6+4*t,2)}, {v(aw)} offset:{so+st*16*192+4*192+t*64}""")
    def mainloop(nt):
        nrd = 1 + 2 * nt
        g(f"s_waitcnt vmcnt({4*(NS-2)})")
        g("s_barrier")
        reads(0, 0, 0, nt)
        buf = 0
        for c in range(NCH):
            for st in range(4):
                last = (c == NCH - 1 and st == 3)
                if st == 3 and c + 1 < NCH:
                    newer = min(c + NS - 2, NCH - 1) - (c + 1)
                    g(f"s_waitcnt vmcnt({4*newer})\ns_barrier")
                    if c + NS - 1 < NCH: dma(c + NS - 1)
                if not last:
                    nc, nst = (c, st + 1) if st < 3 else (c + 1, 0)
                    reads(nc, nst, buf ^ 1, nt)
                    g(f"s_waitcnt lgkmcnt({nrd})")
                else:
                    g("s_waitcnt lgkmcnt(0)")
                b = FR + buf * 12
                for t in range(nt):
                    g(f"v_mfma_f32_32x32x16_bf16 {vr(ACC+16*t,16)}, {vr(b+4+4*t,4)}, {vr(b,4)}, {vr(ACC+16*t,16)}")
                buf ^= 1
        g("s_nop 15\ns_nop 3")
    def epilogue(nt):
        g(f"""s_lshl_b32 {s(s_t0)}, {s(s_mt)}, 7
        s_and_b32 {s(s_t1)}, {s(s_w)}, 3
        s_lshl_b32 {s(s_t1)}, {s(s_t1)}, 5
        s_add_u32 {s(s_t0)}, {s(s_t0)}, {s(s_t1)}
        v_and_b32 {v(v_t0)}, 31, {v(v_lane)}
        v_add_u32 {v(v_t0)}, {s(s_t0)}, {v(v_t0)}             ; token
        v_mul_u32_u24 {v(v_off)}, 3072, {v(v_t0)}
        v_lshrrev_b32 {v(v_t1)}, 5, {v(v_lane)}
        v_lshl_add_u32 {v(v_off)}, {v(v_t1)}, 4, {v(v_off)}   ; + h*16
        s_lshr_b32 {s(s_t0)}, {s(s_w)}, 2
        s_lshl_b32 {s(s_t0)}, {s(s_t0)}, 6
        s_mul_i32 {s(s_t1)}, {s(s_nt)}, 96
        s_add_u32 {s(s_t0)}, {s(s_t0)}, {s(s_t1)}
        s_lshl_b32 {s(s_t0)}, {s(s_t0)}, 1
        s_add_u32 {s(s_t0)}, {s(s_t0)}, {WS_H}
        s_waitcnt vmcnt(0)""")
        for t in range(nt):
            for gp in range(2):
                a = ACC + 16*t + 8*gp
                for ii in range(2):
                    bb = v_bias + 8*t + 4*gp + 2*ii
                    for q in range(4):
                        src = bb + q // 2
                        if q % 2 == 0: g(f"v_lshlrev_b32 {v(v_t2)}, 16, {v(src)}")
                        else: g(f"v_and_b32 {v(v_t2)}, 0xffff0000, {v(src)}")
                        r = a + 4*ii + q
                        g(f"v_add_f32 {v(r)}, {v(r)}, {v(v_t2)}\nv_max_f32 {v(r)}, 0, {v(r)}\nv_mul_f32 {v(r)}, {v(r)}, {v(r)}")
                for q in range(4): g(f"v_cvt_pk_bf16_f32 {v(v_pk+q)}, {v(a+2*q)}, {v(a+2*q+1)}")
                g(f"buffer_store_dwordx4 {vr(v_pk,4)}, {v(v_off)}, {sr(SWS,4)}, {s(s_t0)} offen offset:{(t*32+16*gp)*2}")
                g("s_nop 1")
        g("s_endpgm")
    mainloop(2); epilogue(2)
    g.label(L('one'))
    mainloop(1); epilogue(1)
    if standalone:
        g.label(L('exit'))
        g("s_endpgm")
        g.kernel_end(name, NV)
    return dict(lds=NS*SLOT)
```

```python
from common import *

def gen_fin(g, name="fin_kernel", NS=4, standalone=True):
    SLOT = 8192 + 10240
    SW2, SWO, SWS, SOUT, SB2 = 4, 8, 12, 36, 40
    s_mb, s_ct, s_w, s_t0, s_t1, s_m0x, s_m0w, s_kx, s_kw = 16, 17, 18, 19, 20, 21, 22, 23, 24
    v_lane, v_t0, v_t1, v_t2, v_t3 = 1, 2, 3, 4, 5
    v_dxh, v_dxo, v_dw0, v_dw1 = 6, 7, 8, 9
    v_ax = [10, 11]; v_axh = [12, 13]
    v_aw, v_awh = 14, 15
    v_g = 16; v_b2 = 18
    FR = 24
    ACCB, ACCA = 56, 68
    v_off = 80; v_pk = 82
    NV = 88
    L = lambda x: f"{name}_{x}"
    if standalone:
        g.kernel_start(name)
        g(f"s_cmp_ge_u32 s2, 256\ns_cbranch_scc1 {L('exit')}")
    g(f"""s_and_b32 {s(s_t0)}, s2, 7
    s_lshr_b32 {s(s_t1)}, s2, 3
    s_lshr_b32 {s(s_mb)}, {s(s_t0)}, 1
    s_lshl_b32 {s(s_mb)}, {s(s_mb)}, 3
    s_and_b32 {s(s_ct)}, {s(s_t1)}, 7
    s_add_u32 {s(s_mb)}, {s(s_mb)}, {s(s_ct)}
    s_and_b32 {s(s_ct)}, {s(s_t0)}, 1
    s_lshl_b32 {s(s_ct)}, {s(s_ct)}, 2
    s_lshr_b32 {s(s_t1)}, {s(s_t1)}, 3
    s_add_u32 {s(s_ct)}, {s(s_ct)}, {s(s_t1)}""")
    g.srd(SW2, "w2"); g.srd(SWO, "wo"); g.srd(SWS, "ws"); g.srd(SOUT, "out"); g.srd(SB2, "b2")
    g(f"""v_lshrrev_b32 {v(v_t0)}, 6, v0
    v_and_b32 {v(v_lane)}, 63, v0
    v_readfirstlane_b32 {s(s_w)}, {v(v_t0)}""")
    g(f"""v_lshrrev_b32 {v(v_t0)}, 3, {v(v_lane)}            ; lane>>3
    v_lshrrev_b32 {v(v_t1)}, 4, {v(v_lane)}                 ; lane>>4
    v_and_b32 {v(v_t2)}, 7, {v(v_lane)}
    s_and_b32 {s(s_t0)}, {s(s_w)}, 1
    s_lshl_b32 {s(s_t0)}, {s(s_t0)}, 2
    v_add_u32 {v(v_t1)}, {s(s_t0)}, {v(v_t1)}               ; (row>>1)&7
    v_xor_b32 {v(v_t3)}, {v(v_t2)}, {v(v_t1)}               ; p
    s_lshl_b32 {s(s_t0)}, {s(s_mb)}, 6
    s_lshl_b32 {s(s_t1)}, {s(s_w)}, 3
    s_add_u32 {s(s_t0)}, {s(s_t0)}, {s(s_t1)}
    v_add_u32 {v(v_t0)}, {s(s_t0)}, {v(v_t0)}               ; row
    v_mul_u32_u24 {v(v_dxh)}, 3072, {v(v_t0)}
    v_lshl_add_u32 {v(v_dxh)}, {v(v_t3)}, 4, {v(v_dxh)}
    v_mul_u32_u24 {v(v_dxo)}, 1280, {v(v_t0)}
    v_lshl_add_u32 {v(v_dxo)}, {v(v_t3)}, 4, {v(v_dxo)}""")
    for j, dst in ((0, v_dw0), (1, v_dw1)):
        g(f"""s_mul_i32 {s(s_t0)}, {s(s_w)}, 80
        s_add_u32 {s(s_t0)}, {s(s_t0)}, {64*j}
        v_add_u32 {v(v_t0)}, {s(s_t0)}, {v(v_lane)}
        v_mul_u32_u24 {v(v_t1)}, 205, {v(v_t0)}
        v_lshrrev_b32 {v(v_t1)}, 11, {v(v_t1)}                 ; /10
        v_mul_u32_u24 {v(v_t2)}, 10, {v(v_t1)}
        v_sub_u32 {v(v_t2)}, {v(v_t0)}, {v(v_t2)}
        v_mul_u32_u24 {v(v_t1)}, 1280, {v(v_t1)}
        v_lshl_add_u32 {v(dst)}, {v(v_t2)}, 4, {v(v_t1)}
        s_mul_i32 {s(s_t0)}, {s(s_ct)}, 160
        v_add_u32 {v(dst)}, {s(s_t0)}, {v(dst)}
        v_subrev_u32 {v(dst)}, {1024*j}, {v(dst)}""")
    g(f"""s_lshl_b32 {s(s_m0x)}, {s(s_w)}, 10
    s_mul_i32 {s(s_m0w)}, {s(s_w)}, 1280
    s_add_u32 {s(s_m0w)}, {s(s_m0w)}, 8192
    s_waitcnt lgkmcnt(0)""")
    for r, k in ((SW2, "w2"), (SWO, "wo"), (SWS, "ws"), (SOUT, "out"), (SB2, "b2")): g.srd_fin(r, k)
    NCH = 34
    def dma(c):
        slot = c % NS
        ffn = c < 24
        kc = c if ffn else c - 24
        g(f"""s_add_u32 m0, {s(s_m0x)}, {slot*SLOT}
        s_mov_b32 {s(s_kx)}, {(WS_H if ffn else WS_O) + kc*128}
        s_mov_b32 {s(s_kw)}, {kc*64*1280}
        buffer_load_dwordx4 {v(v_dxh if ffn else v_dxo)}, {sr(SWS,4)}, {s(s_kx)} offen lds
        s_add_u32 m0, {s(s_m0w)}, {slot*SLOT}
        s_nop 0
        buffer_load_dwordx4 {v(v_dw0)}, {sr(SW2 if ffn else SWO,4)}, {s(s_kw)} offen lds
        s_mov_b32 exec_lo, 0xffff
        s_mov_b32 exec_hi, 0
        buffer_load_dwordx4 {v(v_dw1)}, {sr(SW2 if ffn else SWO,4)}, {s(s_kw)} offen offset:1024 lds
        s_mov_b64 exec, -1""")
    g(f"""s_lshl_b32 {s(s_t0)}, {s(s_mb)}, 6
    s_and_b32 {s(s_t1)}, {s(s_w)}, 3
    s_lshl_b32 {s(s_t1)}, {s(s_t1)}, 4
    s_add_u32 {s(s_t0)}, {s(s_t0)}, {s(s_t1)}
    v_and_b32 {v(v_t0)}, 15, {v(v_lane)}
    v_add_u32 {v(v_t0)}, {s(s_t0)}, {v(v_t0)}               ; token
    v_mul_u32_u24 {v(v_off)}, 1280, {v(v_t0)}
    v_lshlrev_b32 {v(v_t0)}, 2, {v(v_t0)}
    s_mov_b32 {s(s_t0)}, {WS_G}
    buffer_load_dword {v(v_g)}, {v(v_t0)}, {sr(SWS,4)}, {s(s_t0)} offen
    v_lshrrev_b32 {v(v_t1)}, 4, {v(v_lane)}                 ; q
    v_lshlrev_b32 {v(v_t1)}, 3, {v(v_t1)}                   ; q*8 bytes
    s_mul_i32 {s(s_t0)}, {s(s_ct)}, 160
    s_lshr_b32 {s(s_t1)}, {s(s_w)}, 2
    s_mul_i32 {s(s_t1)}, {s(s_t1)}, 96
    s_add_u32 {s(s_t0)}, {s(s_t0)}, {s(s_t1)}
    v_add_u32 {v(v_t1)}, {s(s_t0)}, {v(v_t1)}
    v_add_u32 {v(v_off)}, {v(v_off)}, {v(v_t1)}""")
    for t in range(3):
        g(f"buffer_load_dwordx2 {vr(v_b2+2*t,2)}, {v(v_t1)}, {sr(SB2,4)}, 0 offen offset:{t*32}")
    for c in range(NS - 1): dma(c)
    g(f"""v_and_b32 {v(v_t0)}, 15, {v(v_lane)}               ; tok
    v_lshrrev_b32 {v(v_t1)}, 4, {v(v_lane)}                 ; q
    v_bfe_u32 {v(v_t2)}, {v(v_t0)}, 1, 3
    v_xor_b32 {v(v_t2)}, {v(v_t2)}, {v(v_t1)}
    v_lshlrev_b32 {v(v_t2)}, 4, {v(v_t2)}
    s_and_b32 {s(s_t0)}, {s(s_w)}, 3
    s_lshl_b32 {s(s_t0)}, {s(s_t0)}, 11                     ; m*16 rows*128
    v_lshl_add_u32 {v(v_t0)}, {v(v_t0)}, 7, {v(v_t2)}
    v_add_u32 {v(v_ax[0])}, {s(s_t0)}, {v(v_t0)}
    v_xor_b32 {v(v_ax[1])}, 64, {v(v_ax[0])}
    v_add_u32 {v(v_axh[0])}, {2*SLOT}, {v(v_ax[0])}
    v_add_u32 {v(v_axh[1])}, {2*SLOT}, {v(v_ax[1])}
    v_lshrrev_b32 {v(v_t0)}, 1, {v(v_t1)}                   ; q>>1
    v_lshlrev_b32 {v(v_t0)}, 4, {v(v_t0)}
    v_and_b32 {v(v_t2)}, 1, {v(v_t1)}
    v_lshl_add_u32 {v(v_t0)}, {v(v_t2)}, 2, {v(v_t0)}
    v_bfe_u32 {v(v_t2)}, {v(v_lane)}, 2, 2
    v_add_u32 {v(v_t0)}, {v(v_t0)}, {v(v_t2)}               ; row
    v_mul_u32_u24 {v(v_t0)}, 160, {v(v_t0)}
    v_and_b32 {v(v_t2)}, 3, {v(v_lane)}
    v_lshl_add_u32 {v(v_t0)}, {v(v_t2)}, 3, {v(v_t0)}
    s_lshr_b32 {s(s_t0)}, {s(s_w)}, 2
    s_mul_i32 {s(s_t0)}, {s(s_t0)}, 96
    s_add_u32 {s(s_t0)}, {s(s_t0)}, 8192
    v_add_u32 {v(v_aw)}, {s(s_t0)}, {v(v_t0)}
    v_add_u32 {v(v_awh)}, {2*SLOT}, {v(v_aw)}""")
    for i in range(24): g(f"v_mov_b32 {v(ACCB+i)}, 0")
    g(f"s_cmp_ge_u32 {s(s_w)}, 4\ns_cbranch_scc1 {L('two')}")
    def reads(c, st, buf, nt):
        slot = c % NS
        so = (slot % 2) * SLOT
        aw = v_awh if slot >= 2 else v_aw
        ax = (v_axh if slot >= 2 else v_ax)[st]
        b = FR + buf * 16
        g(f"ds_read_b128 {vr(b,4)}, {v(ax)} offset:{so}")
        for t in range(nt):
            g(f"""ds_read_b64_tr_b16 {vr(b+4+4*t,2)}, {v(aw)} offset:{so+st*5120+t*32}
            ds_read_b64_tr_b16 {vr(b+6+4*t,2)}, {v(aw)} offset:{so+st*5120+1280+t*32}""")
    def body(nt):
        nrd = 1 + 2 * nt
        g(f"s_waitcnt vmcnt({3*(NS-2)})\ns_barrier")
        reads(0, 0, 0, nt)
        buf = 0
        for c in range(NCH):
            acc = ACCB if c < 24 else ACCA
            for st in range(2):
                last = (c == NCH - 1 and st == 1)
                if st == 1 and c + 1 < NCH:
                    newer = min(c + NS - 2, NCH - 1) - (c + 1)
                    g(f"s_waitcnt vmcnt({3*newer})\ns_barrier")
                    if c + NS - 1 < NCH: dma(c + NS - 1)
                if not last:
                    nc, nst = (c, st + 1) if st < 1 else (c + 1, 0)
                    reads(nc, nst, buf ^ 1, nt)
                    g(f"s_waitcnt lgkmcnt({nrd})")
                else:
                    g("s_waitcnt lgkmcnt(0)")
                b = FR + buf * 16
                for t in range(nt):
                    g(f"v_mfma_f32_16x16x32_bf16 {vr(acc+4*t,4)}, {vr(b+4+4*t,4)}, {vr(b,4)}, {vr(acc+4*t,4)}")
                buf ^= 1
        g("s_nop 15")
        g(f"v_sub_f32 {v(v_t3)}, 1.0, {v(v_g)}")
        for t in range(nt):
            for q in range(4):
                src = v_b2 + 2*t + q // 2
                if q % 2 == 0: g(f"v_lshlrev_b32 {v(v_t2)}, 16, {v(src)}")
                else: g(f"v_and_b32 {v(v_t2)}, 0xffff0000, {v(src)}")
                rb, ra = ACCB + 4*t + q, ACCA + 4*t + q
                g(f"v_add_f32 {v(rb)}, {v(rb)}, {v(v_t2)}\nv_mul_f32 {v(rb)}, {v(rb)}, {v(v_t3)}\nv_fma_f32 {v(rb)}, {v(ra)}, {v(v_g)}, {v(rb)}")
            g(f"""v_cvt_pk_bf16_f32 {v(v_pk+2*t)}, {v(ACCB+4*t)}, {v(ACCB+4*t+1)}
            v_cvt_pk_bf16_f32 {v(v_pk+2*t+1)}, {v(ACCB+4*t+2)}, {v(ACCB+4*t+3)}
            buffer_store_dwordx2 {vr(v_pk+2*t,2)}, {v(v_off)}, {sr(SOUT,4)}, 0 offen offset:{t*32}""")
        g("s_endpgm")
    body(3)
    g.label(L('two'))
    body(2)
    if standalone:
        g.label(L('exit'))
        g("s_endpgm")
        g.kernel_end(name, NV)
    return dict(lds=NS*SLOT)
```

```python
from common import *

def gen_qkv(g, name="qkv_kernel", NS=4):
    NCH = 10
    SX, SW, SWS = 4, 8, 12
    s_mt, s_nt, s_w, s_t0, s_t1, s_m0x, s_m0w, s_kx, s_kw = 16, 17, 18, 19, 20, 21, 22, 23, 24
    s_scale, s_TS, s_base, s_HS = 25, 26, 27, 28
    v_lane, v_t0, v_t1, v_t2, v_t3 = 1, 2, 3, 4, 5
    v_dx0, v_dx1, v_dw0, v_dw1 = 6, 7, 8, 9
    v_ax = [10, 11, 12, 13]; v_axh = [14, 15, 16, 17]
    v_aw, v_awh = 18, 19
    FR = 20
    ACC = 44
    v_off = [76, 77, 78, 79]
    v_pk = 80
    NV = 88
    g.kernel_start(name)
    g(f"""s_cmp_ge_u32 s2, 256
    s_cbranch_scc1 {name}_exit
    s_and_b32 {s(s_t0)}, s2, 7
    s_lshr_b32 {s(s_t1)}, s2, 3
    s_lshr_b32 {s(s_mt)}, {s(s_t0)}, 1
    s_lshl_b32 {s(s_mt)}, {s(s_mt)}, 2
    s_and_b32 {s(s_nt)}, {s(s_t1)}, 3
    s_add_u32 {s(s_mt)}, {s(s_mt)}, {s(s_nt)}
    s_and_b32 {s(s_nt)}, {s(s_t0)}, 1
    s_lshl_b32 {s(s_nt)}, {s(s_nt)}, 3
    s_lshr_b32 {s(s_t1)}, {s(s_t1)}, 2
    s_add_u32 {s(s_nt)}, {s(s_nt)}, {s(s_t1)}
    s_cmp_ge_u32 {s(s_nt)}, 15
    s_cbranch_scc1 {name}_exit""")
    g.srd(SX, "ax"); g.srd(SW, "wqkv"); g.srd(SWS, "ws")
    g(f"""v_lshrrev_b32 {v(v_t0)}, 6, v0
    v_and_b32 {v(v_lane)}, 63, v0
    v_readfirstlane_b32 {s(s_w)}, {v(v_t0)}""")
    g(f"""v_lshrrev_b32 {v(v_t0)}, 3, {v(v_lane)}          ; lane>>3
    v_lshrrev_b32 {v(v_t1)}, 4, {v(v_lane)}               ; lane>>4
    v_and_b32 {v(v_t2)}, 7, {v(v_lane)}                   ; lane&7
    s_lshl_b32 {s(s_t0)}, {s(s_mt)}, 7
    s_lshl_b32 {s(s_t1)}, {s(s_w)}, 4
    s_add_u32 {s(s_t0)}, {s(s_t0)}, {s(s_t1)}             ; mt*128 + 16w
    v_add_u32 {v(v_t0)}, {s(s_t0)}, {v(v_t0)}             ; row
    s_movk_i32 {s(s_t1)}, 1280
    v_mul_lo_u32 {v(v_t0)}, {v(v_t0)}, {s(s_t1)}          ; row*1280
    v_xor_b32 {v(v_t3)}, {v(v_t2)}, {v(v_t1)}             ; p for j=0
    v_lshl_add_u32 {v(v_dx0)}, {v(v_t3)}, 4, {v(v_t0)}
    v_xor_b32 {v(v_t3)}, 4, {v(v_t3)}
    v_lshl_add_u32 {v(v_dx1)}, {v(v_t3)}, 4, {v(v_t0)}
    v_add_u32 {v(v_dx1)}, {8*1280-1024}, {v(v_dx1)}
    v_and_b32 {v(v_t2)}, 15, {v(v_lane)}                  ; lane&15
    v_lshlrev_b32 {v(v_t3)}, 2, {v(v_t1)}                 ; 4*(lane>>4)
    v_xor_b32 {v(v_t2)}, {v(v_t2)}, {v(v_t3)}             ; p
    s_lshl_b32 {s(s_t0)}, {s(s_w)}, 3
    v_add_u32 {v(v_t1)}, {s(s_t0)}, {v(v_t1)}             ; k = 8w + lane>>4
    s_movk_i32 {s(s_t1)}, 3840
    v_mul_lo_u32 {v(v_t1)}, {v(v_t1)}, {s(s_t1)}
    v_lshl_add_u32 {v(v_dw0)}, {v(v_t2)}, 4, {v(v_t1)}
    s_lshl_b32 {s(s_t0)}, {s(s_nt)}, 8
    v_add_u32 {v(v_dw0)}, {s(s_t0)}, {v(v_dw0)}
    v_add_u32 {v(v_dw1)}, {4*3840-1024}, {v(v_dw0)}
    s_lshl_b32 {s(s_m0x)}, {s(s_w)}, 11
    s_add_u32 {s(s_m0w)}, {s(s_m0x)}, 16384
    s_waitcnt lgkmcnt(0)""")
    g.srd_fin(SX, "ax"); g.srd_fin(SW, "wqkv"); g.srd_fin(SWS, "ws")
    def dma(c):
        slot = c % NS
        g(f"""s_add_u32 m0, {s(s_m0x)}, {slot*32768}
        s_mov_b32 {s(s_kx)}, {c*128}
        s_mov_b32 {s(s_kw)}, {c*245760}
        buffer_load_dwordx4 {v(v_dx0)}, {sr(SX,4)}, {s(s_kx)} offen lds
        buffer_load_dwordx4 {v(v_dx1)}, {sr(SX,4)}, {s(s_kx)} offen offset:1024 lds
        s_add_u32 m0, {s(s_m0w)}, {slot*32768}
        s_nop 0
        buffer_load_dwordx4 {v(v_dw0)}, {sr(SW,4)}, {s(s_kw)} offen lds
        buffer_load_dwordx4 {v(v_dw1)}, {sr(SW,4)}, {s(s_kw)} offen offset:1024 lds""")
    for c in range(min(NS - 1, NCH)): dma(c)
    g(f"""v_and_b32 {v(v_t0)}, 31, {v(v_lane)}            ; r
    v_lshrrev_b32 {v(v_t1)}, 5, {v(v_lane)}               ; h
    v_bfe_u32 {v(v_t2)}, {v(v_t0)}, 1, 3                  ; g(r)
    v_xor_b32 {v(v_t2)}, {v(v_t2)}, {v(v_t1)}             ; g^h
    v_lshlrev_b32 {v(v_t2)}, 4, {v(v_t2)}
    s_and_b32 {s(s_t0)}, {s(s_w)}, 1
    s_lshl_b32 {s(s_t0)}, {s(s_t0)}, 13
    v_lshl_add_u32 {v(v_t0)}, {v(v_t0)}, 7, {v(v_t2)}
    v_add_u32 {v(v_ax[0])}, {s(s_t0)}, {v(v_t0)}""")
    for st in range(1, 4):
        g(f"v_xor_b32 {v(v_ax[st])}, {32*st}, {v(v_ax[0])}")
    for st in range(4):
        g(f"v_add_u32 {v(v_axh[st])}, 65536, {v(v_ax[st])}")
    g(f"""v_lshrrev_b32 {v(v_t0)}, 4, {v(v_lane)}         ; G
    v_and_b32 {v(v_t1)}, 1, {v(v_t0)}                     ; colhalf
    v_lshrrev_b32 {v(v_t0)}, 1, {v(v_t0)}                 ; khalf
    v_bfe_u32 {v(v_t2)}, {v(v_lane)}, 2, 2                ; r4
    v_lshl_add_u32 {v(v_t0)}, {v(v_t0)}, 3, {v(v_t2)}     ; 8*khalf + r4
    v_lshlrev_b32 {v(v_t0)}, 8, {v(v_t0)}                 ; *256
    v_bfe_u32 {v(v_t3)}, {v(v_lane)}, 1, 1                ; c>>1
    v_lshl_add_u32 {v(v_t1)}, {v(v_t1)}, 1, {v(v_t3)}     ; colhalf*2 + (c>>1)
    s_lshr_b32 {s(s_t0)}, {s(s_w)}, 1                     ; ct
    s_lshl_b32 {s(s_t1)}, {s(s_t0)}, 2
    v_add_u32 {v(v_t1)}, {s(s_t1)}, {v(v_t1)}             ; p
    v_lshlrev_b32 {v(v_t2)}, 2, {v(v_t2)}                 ; 4*r4
    v_xor_b32 {v(v_t1)}, {v(v_t1)}, {v(v_t2)}
    v_lshl_add_u32 {v(v_t0)}, {v(v_t1)}, 4, {v(v_t0)}
    v_and_b32 {v(v_t3)}, 1, {v(v_lane)}
    v_lshl_add_u32 {v(v_t0)}, {v(v_t3)}, 3, {v(v_t0)}
    v_add_u32 {v(v_aw)}, 16384, {v(v_t0)}
    v_add_u32 {v(v_awh)}, 65536, {v(v_aw)}""")
    for i in range(32): g(f"v_mov_b32 {v(ACC+i)}, 0")
    g(f"s_cmp_ge_u32 {s(s_nt)}, 10\ns_cbranch_scc1 {name}_vtype")

    def reads(c, st, buf):
        slot = c % NS
        hi = slot >= 2
        so = (slot % 2) * 32768
        ax = (v_axh if hi else v_ax)[st]; aw = v_awh if hi else v_aw
        b = FR + buf * 12
        g(f"""ds_read_b128 {vr(b,4)}, {v(ax)} offset:{so}
        ds_read_b128 {vr(b+4,4)}, {v(ax)} offset:{so+4096}
        ds_read_b64_tr_b16 {vr(b+8,2)}, {v(aw)} offset:{so+st*4096}
        ds_read_b64_tr_b16 {vr(b+10,2)}, {v(aw)} offset:{so+st*4096+1024}""")
    def mfmas(buf, vtype):
        b = FR + buf * 12
        for j in range(2):
            A, B = (vr(b+4*j,4), vr(b+8,4)) if vtype else (vr(b+8,4), vr(b+4*j,4))
            g(f"v_mfma_f32_32x32x16_bf16 {vr(ACC+16*j,16)}, {A}, {B}, {vr(ACC+16*j,16)}")
    def mainloop(vtype):
        g(f"s_waitcnt vmcnt({4*(min(NS-1,NCH)-1)})\ns_barrier")
        reads(0, 0, 0)
        buf = 0
        for c in range(NCH):
            for st in range(4):
                last = (c == NCH - 1 and st == 3)
                if st == 3 and c + 1 < NCH:
                    newer = min(c + NS - 2, NCH - 1) - (c + 1)
                    g(f"s_waitcnt vmcnt({4*newer})\ns_barrier")
                    if c + NS - 1 < NCH: dma(c + NS - 1)
                if not last:
                    nc, nst = (c, st + 1) if st < 3 else (c + 1, 0)
                    reads(nc, nst, buf ^ 1)
                    g("s_waitcnt lgkmcnt(4)")
                else:
                    g("s_waitcnt lgkmcnt(0)")
                mfmas(buf, vtype)
                buf ^= 1
        g("s_nop 15\ns_nop 3")
    mainloop(False)
    g(f"""s_cmp_ge_u32 {s(s_nt)}, 5
    s_mov_b32 {s(s_scale)}, {f32hex(QSCALE)}
    s_cmov_b32 {s(s_scale)}, 1.0
    s_mov_b32 {s(s_TS)}, {QI_TS}
    s_cmov_b32 {s(s_TS)}, {KV_TS}
    s_mov_b32 {s(s_HS)}, {QI_HS}
    s_cmov_b32 {s(s_HS)}, {KV_HS}
    s_cselect_b32 {s(s_base)}, {WS_KV}, {WS_QI}
    s_cselect_b32 {s(s_t0)}, 5, 0
    s_sub_u32 {s(s_t0)}, {s(s_nt)}, {s(s_t0)}             ; nt'
    s_lshl_b32 {s(s_t0)}, {s(s_t0)}, 5
    s_lshr_b32 {s(s_t1)}, {s(s_w)}, 1
    s_lshl_b32 {s(s_t1)}, {s(s_t1)}, 3
    s_add_u32 {s(s_t0)}, {s(s_t0)}, {s(s_t1)}
    v_lshrrev_b32 {v(v_t0)}, 5, {v(v_lane)}               ; h
    v_add_u32 {v(v_t0)}, {s(s_t0)}, {v(v_t0)}             ; gq(i=0)
    v_and_b32 {v(v_t1)}, 31, {v(v_lane)}                  ; tok
    s_lshl_b32 {s(s_t0)}, {s(s_mt)}, 2
    s_and_b32 {s(s_t1)}, {s(s_w)}, 1
    s_lshl_b32 {s(s_t1)}, {s(s_t1)}, 1
    s_add_u32 {s(s_t0)}, {s(s_t0)}, {s(s_t1)}
    s_mul_i32 {s(s_t0)}, {s(s_t0)}, {s(s_TS)}
    s_add_u32 {s(s_base)}, {s(s_base)}, {s(s_t0)}""")
    for i in range(4):
        g(f"""v_add_u32 {v(v_t2)}, {2*i}, {v(v_t0)}          ; gq
        v_mul_u32_u24 {v(v_t3)}, 205, {v(v_t2)}
        v_lshrrev_b32 {v(v_t3)}, 10, {v(v_t3)}                ; head
        v_mul_u32_u24 {v(v_off[i])}, 5, {v(v_t3)}
        v_sub_u32 {v(v_t2)}, {v(v_t2)}, {v(v_off[i])}         ; r
        v_mul_lo_u32 {v(v_off[i])}, {v(v_t3)}, {s(s_HS)}
        v_add_u32 {v(v_off[i])}, {s(s_base)}, {v(v_off[i])}
        v_lshrrev_b32 {v(v_t3)}, 1, {v(v_t2)}                 ; r>>1
        v_lshlrev_b32 {v(v_t3)}, 9, {v(v_t3)}                 ; *512   (r==4 -> 1024)
        v_add_u32 {v(v_off[i])}, {v(v_off[i])}, {v(v_t3)}
        v_and_b32 {v(v_t3)}, 1, {v(v_t2)}
        v_lshl_add_u32 {v(v_off[i])}, {v(v_t3)}, 3, {v(v_off[i])}
        v_cmp_eq_u32 vcc, 4, {v(v_t2)}
        s_nop 1
        v_cndmask_b32 {v(v_t3)}, 4, 3, vcc
        v_lshlrev_b32 {v(v_t3)}, {v(v_t3)}, {v(v_t1)}
        v_add_u32 {v(v_off[i])}, {v(v_off[i])}, {v(v_t3)}""")
    for j in range(2):
        if j == 1: g(f"s_mov_b32 {s(s_t0)}, {s(s_TS)}")
        for i in range(4):
            a = ACC + 16*j + 4*i
            for q in range(4): g(f"v_mul_f32 {v(a+q)}, {s(s_scale)}, {v(a+q)}")
            p = v_pk + 2*(i % 4)
            g(f"""v_cvt_pk_bf16_f32 {v(p)}, {v(a)}, {v(a+1)}
            v_cvt_pk_bf16_f32 {v(p+1)}, {v(a+2)}, {v(a+3)}
            buffer_store_dwordx2 {vr(p,2)}, {v(v_off[i])}, {sr(SWS,4)}, {'0' if j==0 else s(s_t0)} offen""")
        if j == 0: g("s_nop 1")
    g("s_endpgm")
    g.label(f"{name}_vtype")
    mainloop(True)
    g(f"""s_sub_u32 {s(s_t0)}, {s(s_nt)}, 10
    s_lshl_b32 {s(s_t0)}, {s(s_t0)}, 7
    s_lshr_b32 {s(s_t1)}, {s(s_w)}, 1
    s_lshl_b32 {s(s_t1)}, {s(s_t1)}, 5
    s_add_u32 {s(s_t0)}, {s(s_t0)}, {s(s_t1)}             ; f base
    v_and_b32 {v(v_t0)}, 31, {v(v_lane)}
    v_add_u32 {v(v_t0)}, {s(s_t0)}, {v(v_t0)}             ; f
    s_mov_b32 {s(s_t1)}, 52429
    v_mul_lo_u32 {v(v_t1)}, {v(v_t0)}, {s(s_t1)}
    v_lshrrev_b32 {v(v_t1)}, 20, {v(v_t1)}                ; head
    v_mul_u32_u24 {v(v_t2)}, 20, {v(v_t1)}
    v_sub_u32 {v(v_t2)}, {v(v_t0)}, {v(v_t2)}             ; d
    s_mov_b32 {s(s_t1)}, {KV_HS}
    v_mul_lo_u32 {v(v_off[0])}, {v(v_t1)}, {s(s_t1)}
    v_lshrrev_b32 {v(v_t3)}, 5, {v(v_lane)}               ; h
    v_mul_u32_u24 {v(v_t3)}, 21, {v(v_t3)}
    v_add_u32 {v(v_t3)}, {v(v_t3)}, {v(v_t2)}
    v_lshl_add_u32 {v(v_off[0])}, {v(v_t3)}, 4, {v(v_off[0])}
    s_lshl_b32 {s(s_t0)}, {s(s_mt)}, 2
    s_and_b32 {s(s_t1)}, {s(s_w)}, 1
    s_lshl_b32 {s(s_t1)}, {s(s_t1)}, 1
    s_add_u32 {s(s_t0)}, {s(s_t0)}, {s(s_t1)}             ; tile
    s_mul_i32 {s(s_t0)}, {s(s_t0)}, {KV_TS}
    s_add_u32 {s(s_t0)}, {s(s_t0)}, {WS_KV + 1280}
    v_add_u32 {v(v_off[0])}, {s(s_t0)}, {v(v_off[0])}""")
    for q in range(4): g(f"v_mov_b32 {v(v_off[1]+0) if False else v(FR+q)}, 0x3f803f80")
    for j in range(2):
        for u in range(2):
            a = ACC + 16*j + 8*u
            p = v_pk + 4*u
            for q in range(4): g(f"v_cvt_pk_bf16_f32 {v(p+q)}, {v(a+2*q)}, {v(a+2*q+1)}")
            off = j*KV_TS + u*672
            g(f"buffer_store_dwordx4 {vr(p,4)}, {v(v_off[0])}, {sr(SWS,4)}, 0 offen offset:{off}")
        g("s_nop 1")
    g(f"v_cmp_eq_u32 vcc, 0, {v(v_t2)}\ns_and_saveexec_b64 s[30:31], vcc")
    g(f"s_cbranch_execz {name}_exit")
    for j in range(2):
        for u in range(2):
            off = j*KV_TS + u*672 + 320
            g(f"buffer_store_dwordx4 {vr(FR,4)}, {v(v_off[0])}, {sr(SWS,4)}, 0 offen offset:{off}")
    g.label(f"{name}_exit")
    g("s_endpgm")
    g.kernel_end(name, NV)
    return dict(lds=NS*32768)
```

```python
import sys, os
sys.path.insert(0, os.path.dirname(os.path.abspath(__file__)))
from common import *
from k_qkv import gen_qkv
from k_att import gen_att
from k_ffn1 import gen_ffn1
from k_fin import gen_fin
HDR = open("gated_mix__mha_block__dense_activation_squared_relu__prompt.s.ref").read().split("; Override launch")[0] if os.path.exists("gated_mix__mha_block__dense_activation_squared_relu__prompt.s.ref") else ""
def build(extra=None):
    g = Gen()
    body = Gen()
    i1 = gen_qkv(body); i3 = gen_ffn1(body); i2 = gen_att(body); i4 = gen_fin(body)
    launches = [("qkv_kernel", 256, 512, i1["lds"]), ("ffn1_kernel", 256, 512, i3["lds"]), ("att_kernel", 256, 512, i2["lds"]), ("fin_kernel", 256, 512, i4["lds"])]
    if extra: launches += extra
    hdr = HDR
    for k, gx, bx, lds in launches:
        hdr += f"; @launch kernel={k} grid=({gx},1,1) block=({bx},1,1) lds={lds}\n"
    txt = hdr + '.amdgcn_target "amdgcn-amd-amdhsa--gfx950"\n.text\n' + body.text()
    return txt, launches
if __name__ == "__main__":
    txt, launches = build()
    out = sys.argv[1] if len(sys.argv) > 1 else "gated_mix__mha_block__dense_activation_squared_relu__prompt.s"
    open(out, "w").write(txt)
    print("wrote", out, len(txt), launches)
```

```python
import build, sys
from common import *
def with_empty(n, gx):
    txt, launches = build.build(extra=[("nop_kernel", gx, 512, 0)] * n)
    g = Gen(); g.kernel_start("nop_kernel"); g("s_endpgm"); g.kernel_end("nop_kernel", 8)
    return txt + g.text()
open("v_a.s", "w").write(build.build()[0])
open("v_b.s", "w").write(with_empty(4, 1))
open("v_c.s", "w").write(with_empty(4, 256))
```

```python
from common import *
TSG = 123392
T_Q, T_K, T_V = 0, 40960, 81920
V_GS = 10368
WS_T = 0
WS_H2 = 0x800000
WS_O2 = 0xE00000
O_HS = 2048 * 48
WS_G2 = 0x1200000
WS_FL = 0x1300000
FL_QKV = WS_FL
FL_QLD = WS_FL + 0x8000
FL_H = WS_FL + 0x10000
FL_O = WS_FL + 0x18000
WS_STAMP = 0x1400000
```

```python
import sys, os
sys.path.insert(0, os.path.dirname(os.path.abspath(__file__)))
from common2 import *
from r_qkv import gen_qkv_role
from r_att import gen_att_role
from r_ffn1 import gen_ffn1_role
from r_fin import gen_fin_role
REF = "gated_mix__mha_block__dense_activation_squared_relu__prompt.s.ref"
HDR = open(REF).read().split("; Override launch")[0] if os.path.exists(REF) else ""
NAME = "gated_mix__mha_block__dense_activation_squared_relu__prompt_kernel"

def gen_gate2(g, SX, SG, SWS, s_mt, s_nt, s_w, sc1):
    sfx = " sc1" if sc1 else ""
    t1, t7 = 3, 4
    g(f"""s_lshl_b32 s53, {s(s_mt)}, 7
    s_lshl_b32 s54, {s(s_nt)}, 3
    s_add_u32 s53, s53, s54
    s_lshl_b32 s54, {s(s_w)}, 1
    s_add_u32 s53, s53, s54                  ; row
    s_mul_i32 s54, s53, 1280
    s_lshl_b32 s55, s53, 2
    s_add_u32 s55, s55, {WS_G2}
    v_lshlrev_b32 v{t1}, 5, v1""")
    for i in range(24): g(f"v_mov_b32 v{56+i}, 0")
    g(f"""s_mov_b32 exec_hi, 0xff
    buffer_load_dwordx4 v[56:59], v{t1}, {sr(SX,4)}, s54 offen
    buffer_load_dwordx4 v[60:63], v{t1}, {sr(SX,4)}, s54 offen offset:16
    buffer_load_dwordx4 v[64:67], v{t1}, {sr(SX,4)}, s54 offen offset:1280
    buffer_load_dwordx4 v[68:71], v{t1}, {sr(SX,4)}, s54 offen offset:1296
    buffer_load_dwordx4 v[72:75], v{t1}, {sr(SG,4)}, 0 offen
    buffer_load_dwordx4 v[76:79], v{t1}, {sr(SG,4)}, 0 offen offset:16
    s_mov_b32 exec_hi, -1
    s_waitcnt vmcnt(0)
    v_mov_b32 v80, 0
    v_mov_b32 v81, 0""")
    for i in range(8):
        g(f"v_dot2_f32_bf16 v80, v{56+i}, v{72+i}, v80\nv_dot2_f32_bf16 v81, v{64+i}, v{72+i}, v81")
    g("s_nop 3")
    for dpp in ["row_shr:1", "row_shr:2", "row_shr:4", "row_shr:8", "row_bcast:15 row_mask:0xa", "row_bcast:31 row_mask:0xc"]:
        for a in (80, 81):
            g(f"v_add_f32_dpp v{a}, v{a}, v{a} {dpp} bank_mask:0xf" if "row_mask" in dpp else f"v_add_f32_dpp v{a}, v{a}, v{a} {dpp} row_mask:0xf bank_mask:0xf bound_ctrl:0")
        g("s_nop 1")
    for a in (80, 81):
        g(f"v_mul_f32 v{a}, {f32hex(-1.4426950408889634)}, v{a}")
    for a in (80, 81): g(f"v_exp_f32 v{a}, v{a}")
    g("s_nop 0")
    for a in (80, 81): g(f"v_add_f32 v{a}, 1.0, v{a}")
    for a in (80, 81): g(f"v_rcp_f32 v{a}, v{a}")
    g(f"""v_mov_b32 v{t7}, 0
    s_mov_b32 exec_lo, 0
    s_mov_b32 exec_hi, 0x80000000
    buffer_store_dwordx2 v[80:81], v{t7}, {sr(SWS,4)}, s55 offen{sfx}
    s_mov_b64 exec, -1""")

def gen_fused(g, name=NAME, stamps=False, prio_att=0, prio_qkv=3, prio_f=2, prio_fl=1, prio_f2=None, att_split=False, fwait=True, sc1=True, fskip=(), fnone=False, prof=False, trace=False, pretouch=True, stagger=(10,2), att_kw={}, fall=False, nogate_early=False, psleep=4, two=False, fintrace=False, fin_kw={}, fin_early=True, f1_kw={}, dbgdump=False, dyn=False, fskip2=(), l2warm=False):
    L = lambda x: f"fk_{x}"
    SX, SWA, SWS, SAUX, SW2, SWO, SB2, SOUT = 4, 8, 12, 20, 24, 28, 32, 36
    s_w, s_id, s_nonce = 18, 19, 60
    SD = 56
    s_p0, s_p1, s_p2 = 61, 62, 63
    vq = [124, 125, 126]
    uid = [0]
    g.kernel_start(name)
    def stamp(k):
        if stamps: g(f"s_memrealtime s[{64+2*k}:{65+2*k}]")
        if stamps and k in (3, 4): g(f"s_memtime s[{80+2*(k-3)}:{81+2*(k-3)}]")
    stamp(0)
    g(f"s_cmp_ge_u32 s2, 512\ns_cbranch_scc1 {L('exit')}")
    g(f"""s_load_dwordx4 s[4:7], s[0:1], 0
    s_load_dwordx4 s[56:59], s[0:1], 80
    v_lshrrev_b32 v2, 6, v0
    v_and_b32 v1, 63, v0
    v_readfirstlane_b32 {s(s_w)}, v2
    s_mov_b32 {s(s_nonce)}, 0
    s_cmp_ge_u32 s2, 256
    s_cbranch_scc1 {L('frole')}""")
    def ready_a():
        g(f"""s_waitcnt lgkmcnt(0)
        s_mov_b32 s8, s6
        s_mov_b32 s9, s7
        s_mov_b32 s6, {SZ['ax']}
        s_mov_b32 s7, 0x20000
        s_mov_b32 s10, {SZ['wqkv']}
        s_mov_b32 s11, 0x20000
        s_mov_b32 s12, s58
        s_mov_b32 s13, s59
        s_mov_b32 s14, {SZ['ws']}
        s_mov_b32 s15, 0x20000""")
    def get_nonce():
        n = uid[0]; uid[0] += 1
        g(f"""s_cmp_lg_u32 {s(s_nonce)}, 0
        s_cbranch_scc1 {L('gn_done')}{n}
        s_mov_b32 {s(s_p0)}, 0
        v_mov_b32 {v(vq[0])}, 0""")
        g.label(f"{L('gn_loop')}{n}")
        g(f"""global_load_dword {v(vq[1])}, {v(vq[0])}, {sr(SD,2)} sc0 sc1
        s_add_u32 {s(s_p0)}, {s(s_p0)}, 1
        s_waitcnt vmcnt(0)
        v_readfirstlane_b32 {s(s_nonce)}, {v(vq[1])}
        s_cmp_gt_u32 {s(s_p0)}, 0x20000
        s_cbranch_scc1 {L('exit')}
        s_cmp_eq_u32 {s(s_nonce)}, 0
        s_cbranch_scc1 {L('gn_loop')}{n}""")
        g.label(f"{L('gn_done')}{n}")
    def poll(nlanes_mask_lo, nlanes_mask_hi):
        n = uid[0]; uid[0] += 1
        g(f"""s_mov_b32 {s(s_p0)}, 0
        s_mov_b32 exec_lo, {nlanes_mask_lo}
        s_mov_b32 exec_hi, {nlanes_mask_hi}""")
        g.label(f"{L('pl')}{n}")
        g(f"""buffer_load_dword {v(vq[1])}, {v(vq[0])}, {sr(SWS,4)}, 0 offen sc0 sc1
        s_add_u32 {s(s_p0)}, {s(s_p0)}, 1
        s_waitcnt vmcnt(0)
        v_cmp_ne_u32 vcc, {s(s_nonce)}, {v(vq[1])}
        s_cmp_gt_u32 {s(s_p0)}, 0x20000
        s_cbranch_scc1 {L('exit_full')}
        s_cbranch_vccz {L('pd')}{n}
        {('s_sleep %d' % psleep) if psleep else 's_nop 0'}
        s_branch {L('pl')}{n}""")
        g.label(f"{L('pd')}{n}")
        g("s_mov_b64 exec, -1")
    def flag_store(s_off):
        g(f"""v_lshlrev_b32 v123, 4, v1
        v_mov_b32 v124, {s(s_nonce)}
        v_mov_b32 v125, {s(s_nonce)}
        v_mov_b32 v126, {s(s_nonce)}
        v_mov_b32 v127, {s(s_nonce)}
        s_mov_b64 exec, 0xff
        buffer_store_dwordx4 v[124:127], v123, {sr(SWS,4)}, {s(s_off)} offen sc0 sc1
        s_mov_b64 exec, -1""")
    def publish(s_off):
        n = uid[0]; uid[0] += 1
        g(f"""s_waitcnt vmcnt(0)
        s_barrier
        s_cmp_lg_u32 {s(s_w)}, 0
        s_cbranch_scc1 {L('pub')}{n}""")
        get_nonce()
        flag_store(s_off)
        g.label(f"{L('pub')}{n}")
    g(f"s_mov_b32 {s(s_id)}, s2")
    def nonce_pub():
        g(f"""s_or_b32 {s(s_p0)}, s2, {s(s_w)}
        s_cmp_lg_u32 {s(s_p0)}, 0
        s_cbranch_scc1 {L('nononce')}
        s_memrealtime s[62:63]
        s_waitcnt lgkmcnt(0)
        s_or_b32 {s(s_nonce)}, s62, 1
        v_mov_b32 {v(vq[0])}, 0
        v_mov_b32 {v(vq[1])}, {s(s_nonce)}
        s_mov_b64 exec, 1
        global_store_dword {v(vq[0])}, {v(vq[1])}, {sr(SD,2)} sc0 sc1
        s_mov_b64 exec, -1""")
        g.label(L('nononce'))
    if prio_qkv: g(f"s_setprio {prio_qkv}")
    if two: g(f"s_branch {L('att0')}")
    else: g(f"s_cmp_ge_u32 {s(s_id)}, 192\ns_cbranch_scc1 {L('att0')}")
    LA = lambda x: f"fk_q_{x}"
    done_np = [0]
    def nonce_pub_once():
        k = done_np[0]; done_np[0] += 1
        g(f"""s_or_b32 {s(s_p0)}, s2, {s(s_w)}
        s_cmp_lg_u32 {s(s_p0)}, 0
        s_cbranch_scc1 {L('nononce')}{k}
        s_memrealtime s[62:63]
        s_waitcnt lgkmcnt(0)
        s_or_b32 {s(s_nonce)}, s62, 1
        v_mov_b32 {v(vq[0])}, 0
        v_mov_b32 {v(vq[1])}, {s(s_nonce)}
        s_mov_b64 exec, 1
        global_store_dword {v(vq[0])}, {v(vq[1])}, {sr(SD,2)} sc0 sc1
        s_mov_b64 exec, -1""")
        g.label(f"{L('nononce')}{k}")
    def q_loads_done(s_lw, s_mt, s_nt):
        n = uid[0]; uid[0] += 1
        g(f"s_cmp_lg_u32 {s(s_lw)}, 0\ns_cbranch_scc1 {L('ld')}{n}")
        get_nonce()
        g(f"""s_lshl_b32 {s(s_p1)}, {s(s_nt)}, 4
        s_add_u32 {s(s_p1)}, {s(s_p1)}, {s(s_mt)}
        s_lshl_b32 {s(s_p1)}, {s(s_p1)}, 7
        s_add_u32 {s(s_p1)}, {s(s_p1)}, {FL_QLD}""")
        flag_store(s_p1)
        g.label(f"{L('ld')}{n}")
    def q_early():
        n = uid[0]; uid[0] += 1
        if not done_np[0]:
            pass
        nonce_pub_once()
        g(f"s_cmp_lg_u32 {s(s_w)}, 0\ns_cbranch_scc1 {L('qe')}{n}")
        get_nonce()
        g.label(f"{L('qe')}{n}")
    info = gen_qkv_role(g, LA, dict(SX=SX, SWQKV=SWA, SWS=SWS, s_id=s_id, s_w=s_w), sc1=sc1, early=q_early, loads_done=q_loads_done, ready=ready_a, pretouch=pretouch, stagger=stagger)
    stamp(1)
    g(f"""s_lshl_b32 {s(s_p1)}, {s(info['s_nt'])}, 4
    s_add_u32 {s(s_p1)}, {s(s_p1)}, {s(info['s_mt'])}
    s_lshl_b32 {s(s_p1)}, {s(s_p1)}, 7
    s_add_u32 {s(s_p1)}, {s(s_p1)}, {FL_QKV}""")
    publish(s_p1)
    stamp(2)
    g(f"s_branch {L('att')}")
    g.label(L('att0'))
    if not two: ready_a()
    g.label(L('att'))
    def att_wait(s_head, s_qb):
        if two:
            stamp(3); return
        n = uid[0]; uid[0] += 1
        g(f"s_cmp_lg_u32 {s(s_w)}, 0\ns_cbranch_scc1 {L('aw')}{n}")
        get_nonce()
        g(f"""s_lshr_b32 {s(s_p1)}, {s(s_head)}, 3
        v_lshrrev_b32 {v(vq[0])}, 4, v1
        v_lshlrev_b32 {v(vq[0])}, 2, {v(vq[0])}
        v_add_u32 {v(vq[0])}, {s(s_p1)}, {v(vq[0])}
        v_lshlrev_b32 {v(vq[0])}, 4, {v(vq[0])}
        v_and_b32 {v(vq[1])}, 15, v1
        v_add_u32 {v(vq[0])}, {v(vq[1])}, {v(vq[0])}
        v_lshlrev_b32 {v(vq[0])}, 7, {v(vq[0])}
        v_add_u32 {v(vq[0])}, {FL_QKV}, {v(vq[0])}""")
        poll(-1, 0xffff)
        g.label(f"{L('aw')}{n}")
        g("s_barrier")
        stamp(3)
    def att_pub(s_head, s_qb):
        n = uid[0]; uid[0] += 1
        g(f"s_cmp_lg_u32 {s(s_w)}, 0\ns_cbranch_scc1 {L('ap')}{n}")
        g(f"""s_lshl_b32 {s(s_p1)}, {s(s_qb)}, 5
        s_add_u32 {s(s_p1)}, {s(s_p1)}, {s(s_head)}
        s_lshl_b32 {s(s_p1)}, {s(s_p1)}, 7
        s_add_u32 {s(s_p1)}, {s(s_p1)}, {FL_O}""")
        get_nonce()
        flag_store(s_p1)
        g.label(f"{L('ap')}{n}")
        stamp(5)
    def att_hook(s_c):
        n = uid[0]; uid[0] += 1
        g(f"""s_cmp_gt_u32 {s(s_c)}, 1
        s_cbranch_scc1 {L('ah')}{n}
        s_cmp_eq_u32 {s(s_c)}, 1
        s_cbranch_scc1 {L('ah1')}{n}
        v_mov_b32 v0, 0
        global_load_dword v0, v0, {sr(SD,2)} sc0 sc1
        s_branch {L('ah')}{n}""")
        g.label(f"{L('ah1')}{n}")
        g(f"""s_cmp_lg_u32 {s(s_nonce)}, 0
        s_cbranch_scc1 {L('ah')}{n}
        v_readfirstlane_b32 {s(s_nonce)}, v0""")
        g.label(f"{L('ah')}{n}")
    LB = lambda x: f"fk_a_{x}"
    gen_att_role(g, LB, dict(SX=SX, SG=SAUX, SWS=SWS, s_id=s_id, s_w=s_w), sc1=sc1, wait_fn=att_wait, publish_fn=att_pub, gate=False, prio=prio_att, prof=prof, split=att_split, sync_hook=att_hook, epi_prio=3, ready=(ready_a if two else None), post_issue=(nonce_pub_once if two else None), sc1_in=(False if two else None), pre_publish=lambda: stamp(4), stamps=((lambda k: stamp({2: 1, 3: 2}[k]) if k in (2, 3) else None) if (two and stamps) else None), **att_kw)
    g(f"s_branch {L('end')}")
    g.label(L('frole'))
    if fnone: g(f"s_branch {L('exit')}")
    SGW = 84
    g.srd(SWA, "w1"); g.srd(SAUX, "b1"); g.srd(SW2, "w2"); g.srd(SWO, "wo"); g.srd(SB2, "b2"); g.srd(SOUT, "out"); g.srd(SGW, "gw")
    g(f"s_sub_u32 {s(s_id)}, s2, 256\ns_waitcnt lgkmcnt(0)\ns_mov_b32 s12, s58\ns_mov_b32 s13, s59")
    for r, k in ((SX, "ax"), (SWS, "ws"), (SWA, "w1"), (SAUX, "b1"), (SW2, "w2"), (SWO, "wo"), (SB2, "b2"), (SOUT, "out"), (SGW, "gw")): g.srd_fin(r, k)
    if fwait and not two:
        if fall:
            g(f"s_cmp_ge_u32 {s(s_id)}, 192\ns_cselect_b32 s50, 192, 0\ns_sub_u32 s50, {s(s_id)}, s50")
        else:
            g(f"s_cmp_ge_u32 {s(s_id)}, 192\ns_cbranch_scc1 {L('fgo')}\ns_mov_b32 s50, {s(s_id)}")
        g(f"""s_cmp_lg_u32 {s(s_w)}, 0
        s_cbranch_scc1 {L('fw')}""")
        get_nonce()
        g(f"""s_and_b32 {s(s_p1)}, s50, 7
        s_lshr_b32 {s(s_p2)}, s50, 3
        s_lshr_b32 s40, {s(s_p1)}, 1
        s_lshl_b32 s40, s40, 2
        s_and_b32 s41, {s(s_p2)}, 3
        s_add_u32 s40, s40, s41                 ; mt
        s_and_b32 s41, {s(s_p1)}, 1
        s_mul_i32 s41, s41, 6
        s_lshr_b32 {s(s_p2)}, {s(s_p2)}, 2
        s_add_u32 s41, s41, {s(s_p2)}           ; nt
        s_lshl_b32 s41, s41, 4
        s_add_u32 s40, s40, s41
        s_lshl_b32 s40, s40, 7
        s_add_u32 s40, s40, {FL_QLD}
        v_mov_b32 {v(vq[0])}, s40""")
        poll(1, 0)
        g.label(L('fw'))
        g("s_barrier")
        g.label(L('fgo'))
    g("s_setprio 3")
    stamp(1)
    def f1_pub(s_mt, s_nt):
        stamp(2)
        g(f"""s_lshl_b32 {s(s_p1)}, {s(s_mt)}, 4
        s_add_u32 {s(s_p1)}, {s(s_p1)}, {s(s_nt)}
        s_lshl_b32 {s(s_p1)}, {s(s_p1)}, 7
        s_add_u32 {s(s_p1)}, {s(s_p1)}, {FL_H}""")
        publish(s_p1)
    PF = dict(SW2=SW2, SWO=SWO, SB2=SB2, SOUT=SOUT, SWS=SWS, s_id=s_id, s_w=s_w)
    def f_pre(mt, nt):
        gen_gate2(g, SX, SGW, SWS, mt, nt, s_w, sc1)
        if l2warm:
            g(f"""s_lshl_b32 s53, {s(s_id)}, 6
            v_add_u32 v118, s53, v1
            v_lshlrev_b32 v118, 7, v118
            s_cmp_eq_u32 {s(s_w)}, 0
            s_cbranch_scc0 {L('l2w1')}
            buffer_load_dword v119, v118, {sr(SW2,4)}, 0 offen""")
            g.label(L('l2w1'))
            g(f"""s_cmp_eq_u32 {s(s_w)}, 1
            s_cbranch_scc0 {L('l2w2')}
            buffer_load_dword v119, v118, {sr(SWO,4)}, 0 offen""")
            g.label(L('l2w2'))
        if fin_early is True: gen_fin_role(g, lambda x: f"fk_fec_{x}", PF, early_only="compute")
    def f_post_first():
        if fin_early: gen_fin_role(g, lambda x: f"fk_fel_{x}", PF, early_only="loader")
    LC = lambda x: f"fk_1_{x}"
    gen_ffn1_role(g, LC, dict(SX=SX, SW1=SWA, SB1=SAUX, SWS=SWS, s_id=s_id, s_w=s_w), sc1=sc1, publish_fn=f1_pub, skip=fskip, trace=trace, epi_prio=3, loop_prio=prio_f, ld_prio=prio_fl, pre_compute=f_pre, post_first=f_post_first, **f1_kw)
    def wait_h(s_mb, loader):
        n = uid[0]; uid[0] += 1
        if not loader:
            g(f"s_cmp_lg_u32 {s(s_w)}, 0\ns_cbranch_scc1 {L('wh')}{n}")
            get_nonce()
            g(f"""s_lshr_b32 {s(s_p1)}, {s(s_mb)}, 1
            s_lshl_b32 {s(s_p1)}, {s(s_p1)}, 11
            s_add_u32 {s(s_p1)}, {s(s_p1)}, {FL_H}
            v_lshlrev_b32 {v(vq[0])}, 7, v1
            v_add_u32 {v(vq[0])}, {s(s_p1)}, {v(vq[0])}""")
            poll(0xffff, 0)
            g.label(f"{L('wh')}{n}")
        g("s_barrier")
        if not loader:
            stamp(3)
    def wait_o(s_mb, loader):
        n = uid[0]; uid[0] += 1
        if not loader:
            stamp(4)
            g(f"s_cmp_lg_u32 {s(s_w)}, 0\ns_cbranch_scc1 {L('wo')}{n}")
            g(f"""s_lshr_b32 {s(s_p1)}, {s(s_mb)}, 2
            s_lshl_b32 {s(s_p1)}, {s(s_p1)}, 12
            s_add_u32 {s(s_p1)}, {s(s_p1)}, {FL_O}
            v_lshlrev_b32 {v(vq[0])}, 7, v1
            v_add_u32 {v(vq[0])}, {s(s_p1)}, {v(vq[0])}""")
            poll(-1, 0)
            g.label(f"{L('wo')}{n}")
        g("s_barrier")
        if not loader:
            stamp(5)
            g("s_setprio 3")
    def dyn_init(s_mb, ord_off):
        stamp(4)
        get_nonce()
        g(f"""s_lshr_b32 {s(s_p1)}, {s(s_mb)}, 2
        s_lshl_b32 {s(s_p1)}, {s(s_p1)}, 12
        s_add_u32 {s(s_p1)}, {s(s_p1)}, {FL_O}
        v_lshlrev_b32 v127, 7, v1
        v_add_u32 v127, {s(s_p1)}, v127
        s_mov_b32 s88, 0
        s_mov_b32 s89, 0
        s_mov_b32 s90, {ord_off}
        s_mov_b32 s91, 0
        s_mov_b32 s94, 0""")
    def dyn_load():
        g(f"""s_mov_b32 exec_hi, 0
        buffer_load_dword v126, v127, {sr(SWS,4)}, 0 offen sc0 sc1
        s_mov_b32 exec_hi, -1""")
    def dyn_issue():
        pass
    def dyn_finish(tag):
        g(f"""s_andn2_b32 s92, s94, s88
        s_cbranch_scc1 {L('dg' + tag)}""")
        g.label(L('df' + tag))
        dyn_load()
        g(f"""s_waitcnt vmcnt(0)
        s_mov_b32 exec_hi, 0
        v_cmp_eq_u32 vcc, {s(s_nonce)}, v126
        s_mov_b32 exec_hi, -1
        s_nop 1
        s_lshr_b32 s92, vcc_lo, 1
        s_and_b32 s92, s92, vcc_lo
        s_lshr_b32 s93, s92, 2
        s_and_b32 s92, s92, s93
        s_and_b32 s94, s92, 0x11111111
        s_andn2_b32 s92, s94, s88
        s_cbranch_scc1 {L('dg' + tag)}
        s_add_u32 s91, s91, 1
        s_cmp_gt_u32 s91, 0x20000
        s_cbranch_scc1 {L('exit_full')}
        s_sleep 1
        s_branch {L('df' + tag)}""")
        g.label(L('dg' + tag))
        g(f"""s_ff1_i32_b32 s93, s92
        s_bitset1_b32 s88, s93
        s_lshl_b32 s92, s89, 2
        s_add_u32 s92, s92, s90
        v_mov_b32 v126, s93
        v_mov_b32 v119, s92
        s_add_u32 s89, s89, 1
        s_mov_b64 exec, 1
        ds_write_b32 v119, v126
        s_mov_b64 exec, -1""")
    def dyn_after():
        stamp(5)
        g("s_setprio 3")
    DYN = dict(init=dyn_init, issue=dyn_issue, finish=dyn_finish, after=dyn_after) if dyn else None
    LD = lambda x: f"fk_f_{x}"
    gen_fin_role(g, LD, dict(SW2=SW2, SWO=SWO, SB2=SB2, SOUT=SOUT, SWS=SWS, s_id=s_id, s_w=s_w), sc1=sc1, wait_h=wait_h, wait_o=wait_o, skip=(fskip if not fskip2 else fskip2), trace=trace, loop_prio=prio_f2, ld_prio=prio_fl, early=fin_early, dyn=DYN, **fin_kw, stamps=((lambda k: stamp({3: 1, 5: 2}[k]) if k in (3, 5) else None) if (stamps and fintrace) else None))
    g.label(L('end'))
    if stamps and dbgdump:
        g("s_waitcnt vmcnt(0)"); stamp(6); g("s_waitcnt lgkmcnt(0)")
    if stamps and not dbgdump:
        g("s_waitcnt vmcnt(0)"); stamp(6)
        g(f"""s_waitcnt lgkmcnt(0)
        s_mov_b64 exec, 1
        s_lshl_b32 s40, s2, 3
        s_add_u32 s40, s40, {s(s_w)}
        s_lshl_b32 s40, s40, 5
        s_add_u32 s40, s40, {WS_STAMP}
        v_mov_b32 v1, 0""")
        for k in range(7): g(f"v_mov_b32 v{8+k}, s{64+2*k}")
        g("s_sub_u32 s80, s82, s80\nv_mov_b32 v15, s80")
        if prof: g("v_mov_b32 v8, s90\nv_mov_b32 v9, s91")
        g(f"buffer_store_dwordx4 v[8:11], v1, {sr(SWS,4)}, s40 offen\nbuffer_store_dwordx4 v[12:15], v1, {sr(SWS,4)}, s40 offen offset:16")
    if dbgdump:
        g(f"""s_cmp_lg_u32 {s(s_w)}, 0
        s_cbranch_scc1 {L('nodump')}
        s_mov_b64 exec, 1
        v_mov_b32 v1, 0
        s_mov_b32 s41, {WS_STAMP + 0x80000}
        buffer_load_dwordx4 v[4:7], v1, {sr(SWS,4)}, s41 offen sc1
        buffer_load_dword v8, v1, {sr(SWS,4)}, s41 offen offset:16 sc1
        s_waitcnt vmcnt(0)
        s_lshr_b32 s40, s2, 8
        s_mul_i32 s40, s40, 28
        s_add_u32 s40, s40, 4
        v_mov_b32 v20, s40""")
        for k in range(7):
            g(f"v_sub_u32 v3, s{64+2*k}, v4\nglobal_atomic_umax v20, v3, {sr(SD,2)} offset:{4*k}")
        g(f"""s_cmp_lg_u32 s2, 256
        s_cbranch_scc1 {L('nodump')}
        v_sub_u32 v8, v8, v4
        v_mov_b32 v20, 60
        global_store_dword v20, v8, {sr(SD,2)}""")
        g.label(L('nodump'))
        g("s_waitcnt vmcnt(0)")
    g(f"s_branch {L('exit')}")
    g.label(L('exit_full'))
    g("s_mov_b64 exec, -1")
    g.label(L('exit'))
    g("s_endpgm")
    g.kernel_end(name, 128)
    return dict(lds=75264 + (256 if dyn else 0))

def build(**kw):
    body = Gen()
    if kw.get("two"):
        from k_qkv4 import gen_qkv4
        qkw = kw.pop("qkw", {})
        qkw.setdefault("codepf", ("main_kernel", 26112))
        i1 = gen_qkv4(body, name="qkv_kernel", **qkw)
        info = gen_fused(body, name="main_kernel", **kw)
        launches = [("qkv_kernel", 256, 512, i1["lds"]), ("main_kernel", 512, 512, info["lds"])]
        hdr = HDR + "".join(f"; @launch kernel={k} grid=({gx},1,1) block=({bx},1,1) lds={lds}\n" for k, gx, bx, lds in launches)
        return hdr + '.amdgcn_target "amdgcn-amd-amdhsa--gfx950"\n.text\n' + body.text(), launches
    info = gen_fused(body, **kw)
    hdr = HDR + f"; @launch grid=(512,1,1) block=(512,1,1) lds={info['lds']}\n"
    return hdr + '.amdgcn_target "amdgcn-amd-amdhsa--gfx950"\n.text\n' + body.text(), [(NAME, 512, 512, info["lds"])]
if __name__ == "__main__":
    txt, launches = build()
    out = sys.argv[1] if len(sys.argv) > 1 else "v3.s"
    open(out, "w").write(txt); print("wrote", out, len(txt))
```

```python
from common2 import *

def gen_qkv4(g, name="qkv_kernel", NS=4, stamps=False, prefetch=False, stagger=(4,3), warm=True, codepf=None, tlbpf=False, t0dump=False, pretouch=False, diagdelay=0, pair=False, st_sfx='', latewarm=(), pfwait=True, idlepf=False):
    NCH = 10
    SX, SW, SWS = 4, 8, 12
    s_mt, s_nt, s_w, s_t0, s_t1, s_m0x, s_m0w, s_kx, s_kw = 16, 17, 18, 19, 20, 21, 22, 23, 24
    s_scale, s_TS, s_base, s_HS, s_xcd, s_j = 25, 26, 27, 28, 29, 30
    v_lane, v_t0, v_t1, v_t2, v_t3 = 1, 2, 3, 4, 5
    v_dx = [6, 7, 8, 9]; v_dw = [10, 11, 12, 13]
    v_ax = [6, 7, 8, 9]; v_axh = [10, 11, 12, 13]
    v_aw, v_awh = 14, 15
    v_dummy = 16
    FR = 18
    ACC = 50
    v_off = [114, 115, 116, 117]
    v_pk = 18
    NV = 120
    L = lambda x: f"{name}_{x}"
    g.kernel_start(name)
    if t0dump: g("s_memrealtime s[90:91]")
    nst = [0]
    def stamp():
        if stamps:
            g(f"s_memtime s[{40+2*nst[0]}:{41+2*nst[0]}]"); nst[0] += 1
    stamp()
    g(f"""s_cmp_ge_u32 s2, 256
    s_cbranch_scc1 {L('exit')}""")
    g(f"""s_load_dwordx4 s[4:7], s[0:1], 0
    s_load_dwordx2 {sr(SWS,2)}, s[0:1], {KA['ws']}""".replace("s_load_dwordx4 s[4:7], s[0:1], 0", f"s_load_dwordx2 {sr(SX,2)}, s[0:1], 0\ns_load_dwordx2 {sr(SW,2)}, s[0:1], 8"))
    g(f"""s_and_b32 {s(s_xcd)}, s2, 7
    s_lshr_b32 {s(s_j)}, s2, 3
    s_lshr_b32 {s(s_mt)}, {s(s_xcd)}, 1
    s_lshl_b32 {s(s_mt)}, {s(s_mt)}, 2
    s_and_b32 {s(s_t0)}, {s(s_j)}, 3
    s_add_u32 {s(s_mt)}, {s(s_mt)}, {s(s_t0)}
    s_and_b32 {s(s_nt)}, {s(s_xcd)}, 1
    s_lshl_b32 {s(s_nt)}, {s(s_nt)}, 3
    s_lshr_b32 {s(s_t1)}, {s(s_j)}, 2
    s_add_u32 {s(s_nt)}, {s(s_nt)}, {s(s_t1)}
    v_lshrrev_b32 {v(v_t0)}, 6, v0
    v_and_b32 {v(v_lane)}, 63, v0
    v_readfirstlane_b32 {s(s_w)}, {v(v_t0)}
    s_cmp_ge_u32 {s(s_nt)}, 15
    s_cbranch_scc1 {L('idle')}
    s_nop 1
    s_cmp_lt_u32 {s(s_w)}, 4
    s_cbranch_scc1 {L('compute')}""")
    g(f"""s_sub_u32 {s(s_w)}, {s(s_w)}, 4
    v_lshrrev_b32 {v(v_t0)}, 3, {v(v_lane)}          ; lane>>3
    v_lshrrev_b32 {v(v_t1)}, 4, {v(v_lane)}               ; lane>>4
    v_and_b32 {v(v_t2)}, 7, {v(v_lane)}                   ; lane&7
    s_lshl_b32 {s(s_t0)}, {s(s_mt)}, 7
    s_lshl_b32 {s(s_t1)}, {s(s_w)}, 5
    s_add_u32 {s(s_t0)}, {s(s_t0)}, {s(s_t1)}
    v_add_u32 {v(v_t0)}, {s(s_t0)}, {v(v_t0)}             ; row (j=0)
    v_mul_u32_u24 {v(v_t0)}, 1280, {v(v_t0)}
    v_xor_b32 {v(v_t3)}, {v(v_t2)}, {v(v_t1)}
    v_lshl_add_u32 {v(v_dx[0])}, {v(v_t3)}, 4, {v(v_t0)}
    v_xor_b32 {v(v_t3)}, 4, {v(v_t3)}
    v_lshl_add_u32 {v(v_dx[1])}, {v(v_t3)}, 4, {v(v_t0)}
    v_add_u32 {v(v_dx[1])}, {8*1280-1024}, {v(v_dx[1])}
    v_add_u32 {v(v_dx[2])}, {16*1280-2048}, {v(v_dx[0])}
    v_add_u32 {v(v_dx[3])}, {16*1280-2048}, {v(v_dx[1])}
    v_and_b32 {v(v_t2)}, 15, {v(v_lane)}
    v_lshlrev_b32 {v(v_t3)}, 2, {v(v_t1)}
    v_xor_b32 {v(v_t2)}, {v(v_t2)}, {v(v_t3)}             ; p
    s_lshl_b32 {s(s_t0)}, {s(s_w)}, 4
    v_add_u32 {v(v_t1)}, {s(s_t0)}, {v(v_t1)}
    v_mul_u32_u24 {v(v_t1)}, 3840, {v(v_t1)}
    v_lshl_add_u32 {v(v_dw[0])}, {v(v_t2)}, 4, {v(v_t1)}
    s_lshl_b32 {s(s_t0)}, {s(s_nt)}, 8
    v_add_u32 {v(v_dw[0])}, {s(s_t0)}, {v(v_dw[0])}
    v_add_u32 {v(v_dw[1])}, {4*3840-1024}, {v(v_dw[0])}
    v_add_u32 {v(v_dw[2])}, {8*3840-2048}, {v(v_dw[0])}
    v_add_u32 {v(v_dw[3])}, {12*3840-3072}, {v(v_dw[0])}
    s_lshl_b32 {s(s_m0x)}, {s(s_w)}, 12
    s_add_u32 {s(s_m0w)}, {s(s_m0x)}, 16384""")
    if stamps: g("s_memtime s[70:71]")
    g("s_waitcnt lgkmcnt(0)")
    if stamps: g("s_memtime s[72:73]")
    g.srd_fin(SX, "ax"); g.srd_fin(SW, "wqkv"); g.srd_fin(SWS, "ws")
    if t0dump: g("s_memrealtime s[84:85]")
    s_kc = 31
    if stagger:
        d, step = stagger
        m = (65536 + d - 1) // d
        g(f"""s_add_u32 {s(s_kc)}, {s(s_mt)}, {s(s_nt)}
        s_mul_i32 {s(s_t0)}, {s(s_kc)}, {m}
        s_lshr_b32 {s(s_t0)}, {s(s_t0)}, 16
        s_mul_i32 {s(s_t0)}, {s(s_t0)}, {d}
        s_sub_u32 {s(s_kc)}, {s(s_kc)}, {s(s_t0)}
        s_mul_i32 {s(s_kc)}, {s(s_kc)}, {step}""")
    else:
        g(f"s_mov_b32 {s(s_kc)}, 0")
    def dma():
        g(f"""s_add_u32 m0, {s(s_m0x)}, s35
        s_lshl_b32 {s(s_kx)}, {s(s_kc)}, 7
        s_mul_i32 {s(s_kw)}, {s(s_kc)}, 245760
        s_add_u32 {s(s_kc)}, {s(s_kc)}, 1
        s_cmp_eq_u32 {s(s_kc)}, 10
        s_cselect_b32 {s(s_kc)}, 0, {s(s_kc)}""")
        for j in range(4): g(f"buffer_load_dwordx4 {v(v_dx[j])}, {sr(SX,4)}, {s(s_kx)} offen offset:{1024*j} lds")
        g(f"s_add_u32 m0, {s(s_m0w)}, s35\ns_add_u32 s35, s35, 32768")
        for j in range(4): g(f"buffer_load_dwordx4 {v(v_dw[j])}, {sr(SW,4)}, {s(s_kw)} offen offset:{1024*j} lds")
        g(f"s_and_b32 s35, s35, {NS*32768 - 1}")
    assert NS == 4
    g("s_mov_b32 s35, 0")
    dma(); dma()
    g("s_waitcnt vmcnt(8)\ns_barrier")
    if t0dump: g("s_memrealtime s[86:87]")
    dma()
    g("s_mov_b32 s34, 7")
    g.label(L('ll'))
    g("s_waitcnt vmcnt(8)\ns_barrier")
    dma()
    g(f"s_sub_u32 s34, s34, 1\ns_cmp_lg_u32 s34, 0\ns_cbranch_scc1 {L('ll')}")
    g("s_waitcnt vmcnt(8)\ns_barrier")
    g("s_waitcnt vmcnt(0)\ns_barrier")
    g("s_barrier")
    if t0dump:
        g(f"""s_or_b32 s38, s2, {s(s_w)}
        s_cmp_lg_u32 s38, 0
        s_cbranch_scc1 {L('not0')}
        v_mov_b32 {v(v_t0)}, 0
        s_memrealtime s[88:89]
        s_waitcnt lgkmcnt(0)
        v_mov_b32 v20, s90
        v_mov_b32 v21, s84
        v_mov_b32 v22, s86
        v_mov_b32 v23, s88
        s_mov_b32 s38, {WS_STAMP + 0x80000}
        s_mov_b64 exec, 1
        buffer_store_dwordx4 v[20:23], {v(v_t0)}, {sr(SWS,4)}, s38 offen
        s_mov_b64 exec, -1""")
        g.label(L('not0'))
    if diagdelay:
        g(f"s_cmp_lg_u32 s2, 0\ns_cbranch_scc1 {L('nodl')}")
        for _ in range(diagdelay): g("s_sleep 32")
        g.label(L('nodl'))
    if codepf and not idlepf:
        sym, nbytes = codepf
        g(f"""s_cmp_lg_u32 {s(s_w)}, 0
        s_cbranch_scc1 {L('nocp')}
        s_getpc_b64 s[36:37]""")
        g.label(L('pc'))
        g(f"""s_add_u32 s36, s36, {sym} - {L('pc')}
        s_addc_u32 s37, s37, 0
        v_lshlrev_b32 {v(v_t0)}, 7, {v(v_lane)}""")
        for i in range((nbytes + 8191) // 8192):
            nl = min(64, (nbytes - 8192*i + 127) // 128)
            if nl < 64: g(f"s_mov_b64 exec, {hex((1 << nl) - 1)}" if nl <= 31 else f"s_mov_b32 exec_hi, {hex((1 << (nl - 32)) - 1)}")
            g(f"global_load_dword {v(v_t1)}, {v(v_t0)}, s[36:37]\nv_add_u32 {v(v_t0)}, 8192, {v(v_t0)}")
        g("s_mov_b64 exec, -1")
        if latewarm:
            for i, k in enumerate(latewarm):
                g(f"s_load_dwordx2 s[{40+4*i}:{41+4*i}], s[0:1], {KA[k]}")
            g(f"""s_lshl_b32 s38, s2, 6
            v_add_u32 {v(v_t0)}, s38, {v(v_lane)}
            v_lshlrev_b32 {v(v_t0)}, 7, {v(v_t0)}
            s_waitcnt lgkmcnt(0)""")
            for i, k in enumerate(latewarm):
                g(f"s_mov_b32 s{42+4*i}, {SZ[k]}\ns_mov_b32 s{43+4*i}, 0x20000")
                g(f"buffer_load_dword {v(v_t1)}, {v(v_t0)}, s[{40+4*i}:{43+4*i}], 0 offen")
        if tlbpf:
            keys = ["w1", "w2", "wo", "b1", "b2", "gw", "out"]
            for i, k in enumerate(keys): g(f"s_load_dwordx2 s[{64+2*i}:{65+2*i}], s[0:1], {KA[k]}")
            g(f"""v_lshlrev_b32 {v(v_t0)}, 21, {v(v_lane)}
            v_mov_b32 {v(v_t2)}, 0
            s_mov_b64 exec, 0x7f0
            buffer_load_dword {v(v_t1)}, {v(v_t0)}, {sr(SWS,4)}, 0 offen
            s_mov_b64 exec, 1
            s_waitcnt lgkmcnt(0)""")
            for i, k in enumerate(keys): g(f"global_load_dword {v(v_t1)}, {v(v_t2)}, s[{64+2*i}:{65+2*i}]")
            g(f"""v_mov_b32 {v(v_t2)}, {2 << 20}
            global_load_dword {v(v_t1)}, {v(v_t2)}, s[76:77]
            s_mov_b64 exec, -1""")
        if pfwait: g("s_waitcnt vmcnt(0)")
        g.label(L('nocp'))
    if stamps:
        g(f"""s_waitcnt lgkmcnt(0)
        s_mov_b64 exec, 1
        s_lshl_b32 s38, s2, 3
        s_add_u32 s38, s38, {s(s_w)}
        s_add_u32 s38, s38, 4
        s_lshl_b32 s38, s38, 6
        s_add_u32 s38, s38, {WS_FLAG + 0x200000}
        v_mov_b32 v1, 0
        v_mov_b32 v8, s40
        v_mov_b32 v9, s70
        v_mov_b32 v10, s72
        v_mov_b32 v11, s74
        v_mov_b32 v12, s76
        v_mov_b32 v13, s78
        v_mov_b32 v14, 0
        v_mov_b32 v15, 0
        buffer_store_dwordx4 v[8:11], v1, {sr(SWS,4)}, s38 offen
        buffer_store_dwordx4 v[12:15], v1, {sr(SWS,4)}, s38 offen offset:16""")
    g("s_endpgm")
    g.label(L('compute'))
    if prefetch:
        g(f"""s_lshl_b32 s60, s2, 2
        s_add_u32 s60, s60, {s(s_w)}                 ; q
        s_mul_i32 s61, s60, 1280                     ; x row q
        s_add_u32 s62, s61, {1024*1280}              ; x row q+1024
        s_mul_i32 s63, s60, 2185
        s_lshr_b32 s63, s63, 16                      ; q/30
        s_mul_i32 s64, s63, 30
        s_sub_u32 s64, s60, s64
        s_mul_i32 s63, s63, 3840
        s_lshl_b32 s64, s64, 7
        s_add_u32 s63, s63, s64                      ; W line q
        s_add_u32 s65, s60, 1024
        s_min_u32 s65, s65, 1919
        s_mul_i32 s64, s65, 2185
        s_lshr_b32 s64, s64, 16
        s_mul_i32 s66, s64, 30
        s_sub_u32 s66, s65, s66
        s_mul_i32 s64, s64, 3840
        s_lshl_b32 s66, s66, 7
        s_add_u32 s64, s64, s66                      ; W line q+1024
        s_waitcnt lgkmcnt(0)""")
        for c in range(10):
            g(f"""s_load_dword s68, {sr(SX,2)}, s61
            s_load_dword s69, {sr(SW,2)}, s63
            s_load_dword s70, {sr(SX,2)}, s62
            s_load_dword s71, {sr(SW,2)}, s64""")
            if c < 9:
                g(f"""s_add_u32 s61, s61, 128
                s_add_u32 s62, s62, 128
                s_add_u32 s63, s63, 245760
                s_add_u32 s64, s64, 245760""")
        g.srd_fin(SX, "ax"); g.srd_fin(SW, "wqkv"); g.srd_fin(SWS, "ws")
    else:
        g("s_waitcnt lgkmcnt(0)")
        g.srd_fin(SWS, "ws")
    g(f"""v_and_b32 {v(v_t0)}, 31, {v(v_lane)}
    v_lshrrev_b32 {v(v_t1)}, 5, {v(v_lane)}
    v_bfe_u32 {v(v_t2)}, {v(v_t0)}, 1, 3
    v_xor_b32 {v(v_t2)}, {v(v_t2)}, {v(v_t1)}
    v_lshlrev_b32 {v(v_t2)}, 4, {v(v_t2)}
    s_and_b32 {s(s_t0)}, {s(s_w)}, 1
    s_lshl_b32 {s(s_t0)}, {s(s_t0)}, 13
    v_lshl_add_u32 {v(v_t0)}, {v(v_t0)}, 7, {v(v_t2)}
    v_add_u32 {v(v_ax[0])}, {s(s_t0)}, {v(v_t0)}""")
    for st in range(1, 4): g(f"v_xor_b32 {v(v_ax[st])}, {32*st}, {v(v_ax[0])}")
    g(f"""v_lshrrev_b32 {v(v_t0)}, 4, {v(v_lane)}
    v_and_b32 {v(v_t1)}, 1, {v(v_t0)}
    v_lshrrev_b32 {v(v_t0)}, 1, {v(v_t0)}
    v_bfe_u32 {v(v_t2)}, {v(v_lane)}, 2, 2
    v_lshl_add_u32 {v(v_t0)}, {v(v_t0)}, 3, {v(v_t2)}
    v_lshlrev_b32 {v(v_t0)}, 8, {v(v_t0)}
    v_bfe_u32 {v(v_t3)}, {v(v_lane)}, 1, 1
    v_lshl_add_u32 {v(v_t1)}, {v(v_t1)}, 1, {v(v_t3)}
    s_lshr_b32 {s(s_t0)}, {s(s_w)}, 1
    s_lshl_b32 {s(s_t1)}, {s(s_t0)}, 3
    v_add_u32 {v(v_t1)}, {s(s_t1)}, {v(v_t1)}             ; p = fh*8 + ...
    v_lshlrev_b32 {v(v_t2)}, 2, {v(v_t2)}
    v_xor_b32 {v(v_t1)}, {v(v_t1)}, {v(v_t2)}
    v_lshl_add_u32 {v(v_t0)}, {v(v_t1)}, 4, {v(v_t0)}
    v_and_b32 {v(v_t3)}, 1, {v(v_lane)}
    v_lshl_add_u32 {v(v_t0)}, {v(v_t3)}, 3, {v(v_t0)}
    v_add_u32 {v(v_aw)}, 16384, {v(v_t0)}""")
    v_aw2, v_aw2h = 118, 119
    g(f"v_xor_b32 {v(v_aw2)}, 64, {v(v_aw)}")
    g(f"s_cmp_ge_u32 {s(s_nt)}, 10\ns_cbranch_scc1 {L('vtype')}")
    def reads(st, buf):
        b = FR + buf * 16
        g(f"""ds_read_b128 {vr(b,4)}, {v(v_ax[st])}
        ds_read_b64_tr_b16 {vr(b+8,2)}, {v(v_aw)} offset:{st*4096}
        ds_read_b64_tr_b16 {vr(b+10,2)}, {v(v_aw)} offset:{st*4096+1024}
        ds_read_b128 {vr(b+4,4)}, {v(v_ax[st])} offset:4096
        ds_read_b64_tr_b16 {vr(b+12,2)}, {v(v_aw2)} offset:{st*4096}
        ds_read_b64_tr_b16 {vr(b+14,2)}, {v(v_aw2)} offset:{st*4096+1024}""")
    def mfmas(buf, vtype):
        b = FR + buf * 16
        for (j, t) in ((0, 0), (1, 0), (0, 1), (1, 1)):
            X, W = vr(b+4*j, 4), vr(b+8+4*t, 4)
            A, B = (X, W) if vtype else (W, X)
            a = ACC + 16*(2*t + j)
            g(f"v_mfma_f32_32x32x16_bf16 {vr(a,16)}, {A}, {B}, {vr(a,16)}")
    def mainloop(vtype):
        tag = "v" if vtype else "k"
        for i in range(64): g(f"v_mov_b32 {v(ACC+i)}, 0")
        g("s_mov_b32 s34, 10\ns_mov_b32 s35, 0")
        g("s_waitcnt lgkmcnt(0)")
        g("s_barrier")
        reads(0, 0)
        g.label(L('cl' + tag))
        buf = 0
        for st in range(4):
            if st == 3:
                g(f"""s_barrier
                s_add_u32 s35, s35, 32768
                s_cmp_eq_u32 s35, {NS*32768}
                s_cselect_b32 s35, 0, s35
                s_mov_b32 s33, 32768
                s_cmov_b32 s33, {-(NS-1)*32768}""")
                for r in v_ax + [v_aw, v_aw2]: g(f"v_add_u32 {v(r)}, s33, {v(r)}")
            reads((st + 1) % 4, buf ^ 1)
            g("s_waitcnt lgkmcnt(6)")
            mfmas(buf, vtype)
            buf ^= 1
        g(f"s_sub_u32 s34, s34, 1\ns_cmp_lg_u32 s34, 0\ns_cbranch_scc1 {L('cl' + tag)}")
        g("s_waitcnt lgkmcnt(0)\ns_nop 15\ns_nop 3")
    def fin():
        if t0dump:
            n = fin.n; fin.n += 1
            g(f"""s_or_b32 s38, s2, {s(s_w)}
            s_cmp_lg_u32 s38, 0
            s_cbranch_scc1 {L('nf')}{n}
            s_waitcnt vmcnt(0)
            s_memrealtime s[88:89]
            s_waitcnt lgkmcnt(0)
            v_mov_b32 v2, 0
            v_mov_b32 v3, s88
            s_mov_b32 s38, {WS_STAMP + 0x80010}
            s_mov_b64 exec, 1
            buffer_store_dword v3, v2, {sr(SWS,4)}, s38 offen
            s_mov_b64 exec, -1""")
            g.label(f"{L('nf')}{n}")
        if stamps:
            g("s_waitcnt vmcnt(0)")
            stamp()
            g(f"""s_waitcnt lgkmcnt(0)
            s_mov_b64 exec, 1
            s_lshl_b32 s38, s2, 3
            s_add_u32 s38, s38, {s(s_w)}
            s_lshl_b32 s38, s38, 6
            s_add_u32 s38, s38, {WS_FLAG + 0x200000}
            v_mov_b32 v1, 0""")
            for k in range(13): g(f"v_mov_b32 v{8+k}, s{40+2*k}")
            for k in range(4): g(f"buffer_store_dwordx4 v[{8+4*k}:{11+4*k}], v1, {sr(SWS,4)}, s38 offen offset:{16*k}")
        g("s_endpgm")
    fin.n = 0
    g(f"""s_cmp_ge_u32 {s(s_nt)}, 5
    s_mov_b32 {s(s_scale)}, {f32hex(QSCALE)}
    s_cmov_b32 {s(s_scale)}, 1.0
    s_mov_b32 {s(s_TS)}, {TSG}
    s_mov_b32 {s(s_HS)}, 1280
    s_mov_b32 {s(s_base)}, {WS_T + T_Q}
    s_cmov_b32 {s(s_base)}, {WS_T + T_K}
    s_cselect_b32 {s(s_t0)}, 5, 0
    s_sub_u32 {s(s_t0)}, {s(s_nt)}, {s(s_t0)}
    s_lshl_b32 {s(s_t0)}, {s(s_t0)}, 5
    s_lshr_b32 {s(s_t1)}, {s(s_w)}, 1
    s_lshl_b32 {s(s_t1)}, {s(s_t1)}, 4
    s_add_u32 {s(s_t0)}, {s(s_t0)}, {s(s_t1)}
    v_lshrrev_b32 {v(v_t0)}, 5, {v(v_lane)}
    v_add_u32 {v(v_t0)}, {s(s_t0)}, {v(v_t0)}
    v_and_b32 {v(v_t1)}, 31, {v(v_lane)}
    s_lshl_b32 {s(s_t0)}, {s(s_mt)}, 2
    s_and_b32 {s(s_t1)}, {s(s_w)}, 1
    s_lshl_b32 {s(s_t1)}, {s(s_t1)}, 1
    s_add_u32 {s(s_t0)}, {s(s_t0)}, {s(s_t1)}
    s_mul_i32 {s(s_t0)}, {s(s_t0)}, {s(s_TS)}
    s_add_u32 {s(s_base)}, {s(s_base)}, {s(s_t0)}""")
    if pair:
        g(f"""v_lshrrev_b32 {v(v_t2)}, 1, {v(v_lane)}
        v_xor_b32 {v(v_t2)}, {v(v_t2)}, {v(v_lane)}
        v_and_b32 {v(v_t2)}, 1, {v(v_t2)}
        v_mul_u32_u24 {v(v_t2)}, 0x18, {v(v_t2)}
        v_xor_b32 {v(v_aw)}, {v(v_aw)}, {v(v_t2)}
        v_xor_b32 {v(v_aw2)}, {v(v_aw2)}, {v(v_t2)}""")
        voffs = list(range(120, 124))
        g(f"""v_lshrrev_b32 {v(v_t3)}, 5, {v(v_lane)}
        v_sub_u32 {v(v_t0)}, {v(v_t0)}, {v(v_t3)}
        v_lshrrev_b32 {v(v_t0)}, 1, {v(v_t0)}
        v_add_u32 {v(v_t0)}, {v(v_t0)}, {v(v_t3)}""")
        for t in range(2):
            for G in range(2):
                o = voffs[2*t + G]
                g(f"""v_add_u32 {v(v_t2)}, {4*t + 2*G}, {v(v_t0)}           ; gamma
                v_mul_u32_u24 {v(v_t3)}, 205, {v(v_t2)}
                v_lshrrev_b32 {v(v_t3)}, 10, {v(v_t3)}                     ; pair
                v_mul_u32_u24 {v(o)}, 5, {v(v_t3)}
                v_sub_u32 {v(v_t2)}, {v(v_t2)}, {v(o)}                     ; r
                v_mul_u32_u24 {v(o)}, 2560, {v(v_t3)}
                v_add_u32 {v(o)}, {s(s_base)}, {v(o)}
                v_cmp_lt_u32 vcc, 2, {v(v_t2)}
                v_subrev_u32 {v(v_t3)}, 1, {v(v_t2)}
                s_nop 0
                v_cndmask_b32 {v(v_t3)}, {v(v_t2)}, {v(v_t3)}, vcc
                v_cmp_eq_u32 vcc, 2, {v(v_t2)}
                s_nop 1
                v_cndmask_b32 {v(v_t3)}, {v(v_t3)}, 4, vcc
                v_lshl_add_u32 {v(o)}, {v(v_t3)}, 9, {v(o)}
                v_lshl_add_u32 {v(o)}, {v(v_t1)}, 4, {v(o)}""")
        if pretouch: g(f"buffer_load_dword {v(v_dummy)}, {v(voffs[0])}, {sr(SWS,4)}, 0 offen\nbuffer_load_dword {v(v_dummy)}, {v(voffs[3])}, {sr(SWS,4)}, {s(s_TS)} offen")
        mainloop(False)
        g(f"s_mov_b32 {s(s_t0)}, {s(s_TS)}")
        k = 0
        for t in range(2):
            for j in range(2):
                for G in range(2):
                    a = ACC + 16*(2*t + j) + 8*G
                    for q in range(8): g(f"v_mul_f32 {v(a+q)}, {s(s_scale)}, {v(a+q)}")
                    p = v_pk + 4*(k % 8); k += 1
                    for q in range(4): g(f"v_cvt_pk_bf16_f32 {v(p+q)}, {v(a+2*q)}, {v(a+2*q+1)}")
                    g(f"buffer_store_dwordx4 {vr(p,4)}, {v(voffs[2*t+G])}, {sr(SWS,4)}, {'0' if j==0 else s(s_t0)} offen{st_sfx}")
    else:
        voffs = list(range(120, 128))
        for t in range(2):
            for i in range(4):
                o = voffs[4*t + i]
                g(f"""v_add_u32 {v(v_t2)}, {8*t + 2*i}, {v(v_t0)}
                v_mul_u32_u24 {v(v_t3)}, 205, {v(v_t2)}
                v_lshrrev_b32 {v(v_t3)}, 10, {v(v_t3)}
                v_mul_u32_u24 {v(o)}, 5, {v(v_t3)}
                v_sub_u32 {v(v_t2)}, {v(v_t2)}, {v(o)}
                v_mul_lo_u32 {v(o)}, {v(v_t3)}, {s(s_HS)}
                v_add_u32 {v(o)}, {s(s_base)}, {v(o)}
                v_lshrrev_b32 {v(v_t3)}, 1, {v(v_t2)}
                v_lshl_add_u32 {v(o)}, {v(v_t3)}, 9, {v(o)}
                v_and_b32 {v(v_t3)}, 1, {v(v_t2)}
                v_lshl_add_u32 {v(o)}, {v(v_t3)}, 3, {v(o)}
                v_lshrrev_b32 {v(v_t3)}, 2, {v(v_t2)}              ; 1 if r==4
                v_sub_u32 {v(v_t3)}, 4, {v(v_t3)}
                v_lshlrev_b32 {v(v_t3)}, {v(v_t3)}, {v(v_t1)}
                v_add_u32 {v(o)}, {v(o)}, {v(v_t3)}""")
        if pretouch: g(f"buffer_load_dword {v(v_dummy)}, {v(voffs[0])}, {sr(SWS,4)}, 0 offen\nbuffer_load_dword {v(v_dummy)}, {v(voffs[7])}, {sr(SWS,4)}, {s(s_TS)} offen")
        mainloop(False)
        g(f"s_mov_b32 {s(s_t0)}, {s(s_TS)}")
        k = 0
        for t in range(2):
            for j in range(2):
                for i in range(4):
                    a = ACC + 16*(2*t + j) + 4*i
                    for q in range(4): g(f"v_mul_f32 {v(a+q)}, {s(s_scale)}, {v(a+q)}")
                    p = v_pk + 2*(k % 8); k += 1
                    g(f"""v_cvt_pk_bf16_f32 {v(p)}, {v(a)}, {v(a+1)}
                    v_cvt_pk_bf16_f32 {v(p+1)}, {v(a+2)}, {v(a+3)}
                    buffer_store_dwordx2 {vr(p,2)}, {v(voffs[4*t+i])}, {sr(SWS,4)}, {'0' if j==0 else s(s_t0)} offen""")
    fin()
    g.label(L('vtype'))
    g(f"""s_sub_u32 {s(s_t0)}, {s(s_nt)}, 10
    s_lshl_b32 {s(s_t0)}, {s(s_t0)}, 7
    s_lshr_b32 {s(s_t1)}, {s(s_w)}, 1
    s_lshl_b32 {s(s_t1)}, {s(s_t1)}, 6
    s_add_u32 {s(s_t0)}, {s(s_t0)}, {s(s_t1)}
    v_and_b32 {v(v_t0)}, 31, {v(v_lane)}
    v_add_u32 {v(v_t0)}, {s(s_t0)}, {v(v_t0)}
    s_lshl_b32 {s(s_t0)}, {s(s_mt)}, 2
    s_and_b32 {s(s_t1)}, {s(s_w)}, 1
    s_lshl_b32 {s(s_t1)}, {s(s_t1)}, 1
    s_add_u32 {s(s_t0)}, {s(s_t0)}, {s(s_t1)}
    s_mul_i32 {s(s_t0)}, {s(s_t0)}, {TSG}
    s_add_u32 {s(s_base)}, {s(s_t0)}, {WS_T + T_V}""")
    for t in range(2):
        g(f"""v_add_u32 {v(v_t2)}, {32*t}, {v(v_t0)}                ; f
        v_mul_u32_u24 {v(v_t1)}, 410, {v(v_t2)}
        v_lshrrev_b32 {v(v_t1)}, 16, {v(v_t1)}                     ; group = f/160
        v_mul_u32_u24 {v(v_t3)}, 160, {v(v_t1)}
        v_sub_u32 {v(v_t3)}, {v(v_t2)}, {v(v_t3)}                  ; f % 160
        v_mul_u32_u24 {v(120+t)}, {V_GS}, {v(v_t1)}
        v_lshl_add_u32 {v(120+t)}, {v(v_t3)}, 4, {v(120+t)}
        v_lshrrev_b32 {v(v_t3)}, 5, {v(v_lane)}
        v_mul_u32_u24 {v(v_t3)}, 2560, {v(v_t3)}
        v_add_u32 {v(120+t)}, {v(120+t)}, {v(v_t3)}
        v_add_u32 {v(120+t)}, {s(s_base)}, {v(120+t)}""")
    for q in range(4): g(f"v_mov_b32 {v(124+q)}, 0x3f803f80")
    if pretouch: g(f"buffer_load_dword {v(v_dummy)}, {v(120)}, {sr(SWS,4)}, 0 offen")
    mainloop(True)
    k = 0
    g(f"s_mov_b32 {s(s_t1)}, {TSG}\ns_mov_b32 s33, 5120\ns_mov_b32 s34, {TSG + 5120}")
    for t in range(2):
        for j in range(2):
            for u in range(2):
                a = ACC + 16*(2*t + j) + 8*u
                p = v_pk + 4*(k % 8); k += 1
                for q in range(4): g(f"v_cvt_pk_bf16_f32 {v(p+q)}, {v(a+2*q)}, {v(a+2*q+1)}")
                so = ["0", "s33", s(s_t1), "s34"][2*j + u]
                g(f"buffer_store_dwordx4 {vr(p,4)}, {v(120+t)}, {sr(SWS,4)}, {so} offen{st_sfx}")
    g(f"""s_cmp_ge_u32 {s(s_nt)}, 14
    s_cbranch_scc1 {L('noones')}
    s_cmp_ge_u32 {s(s_w)}, 2
    s_cbranch_scc1 {L('noones')}
    s_sub_u32 {s(s_t0)}, {s(s_nt)}, 10
    s_mul_i32 {s(s_t0)}, {s(s_t0)}, {V_GS}
    s_add_u32 {s(s_t0)}, {s(s_t0)}, {s(s_base)}
    s_add_u32 {s(s_t0)}, {s(s_t0)}, 10240
    s_add_u32 {s(s_t1)}, {s(s_t0)}, {TSG}
    v_lshlrev_b32 {v(v_t0)}, 4, {v(v_lane)}
    s_mov_b64 exec, 0xff
    buffer_store_dwordx4 {vr(124,4)}, {v(v_t0)}, {sr(SWS,4)}, {s(s_t0)} offen{st_sfx}
    buffer_store_dwordx4 {vr(124,4)}, {v(v_t0)}, {sr(SWS,4)}, {s(s_t1)} offen{st_sfx}
    s_mov_b64 exec, -1""")
    g.label(L('noones'))
    fin()
    g.label(L('idle'))
    if codepf and idlepf:
        sym, nbytes = codepf
        g(f"""s_cmp_lg_u32 {s(s_w)}, 0
        s_cbranch_scc1 {L('inocp')}
        s_getpc_b64 s[36:37]""")
        g.label(L('ipc'))
        g(f"""s_add_u32 s36, s36, {sym} - {L('ipc')}
        s_addc_u32 s37, s37, 0
        v_lshlrev_b32 {v(v_t0)}, 7, {v(v_lane)}""")
        for i in range((nbytes + 8191) // 8192):
            nl = min(64, (nbytes - 8192*i + 127) // 128)
            if nl < 64: g(f"s_mov_b64 exec, {hex((1 << nl) - 1)}" if nl <= 31 else f"s_mov_b32 exec_hi, {hex((1 << (nl - 32)) - 1)}")
            g(f"global_load_dword {v(v_t1)}, {v(v_t0)}, s[36:37]\nv_add_u32 {v(v_t0)}, 8192, {v(v_t0)}")
        g("s_mov_b64 exec, -1")
        if tlbpf:
            keys = ["w1", "w2", "wo", "b1", "b2", "gw", "out"]
            for i, k in enumerate(keys): g(f"s_load_dwordx2 s[{64+2*i}:{65+2*i}], s[0:1], {KA[k]}")
            g(f"""v_mov_b32 {v(v_t2)}, 0
            s_mov_b64 exec, 1
            s_waitcnt lgkmcnt(0)""")
            for i, k in enumerate(keys): g(f"global_load_dword {v(v_t1)}, {v(v_t2)}, s[{64+2*i}:{65+2*i}]")
            g("s_mov_b64 exec, -1")
        g("s_waitcnt vmcnt(0)")
        g.label(L('inocp'))
    if warm:
        g.srd(52, "w1"); g.srd(56, "w2"); g.srd(60, "wo")
        g(f"""s_lshr_b32 {s(s_t0)}, {s(s_xcd)}, 1
        s_lshl_b32 {s(s_t0)}, {s(s_t0)}, 2
        s_and_b32 {s(s_t1)}, {s(s_j)}, 3
        s_add_u32 {s(s_t0)}, {s(s_t0)}, {s(s_t1)}
        s_lshl_b32 {s(s_t0)}, {s(s_t0)}, 3
        s_add_u32 {s(s_t0)}, {s(s_t0)}, {s(s_w)}
        s_lshl_b32 {s(s_t0)}, {s(s_t0)}, 6
        v_add_u32 {v(v_t0)}, {s(s_t0)}, {v(v_lane)}
        v_lshlrev_b32 {v(v_t0)}, 7, {v(v_t0)}
        s_mov_b32 {s(s_t1)}, {8192*128}
        s_waitcnt lgkmcnt(0)""")
        g.srd_fin(52, "w1"); g.srd_fin(56, "w2"); g.srd_fin(60, "wo")
        g(f"""buffer_load_dword {v(v_dummy)}, {v(v_t0)}, s[52:55], 0 offen
        buffer_load_dword {v(v_dummy)}, {v(v_t0)}, s[52:55], {s(s_t1)} offen
        s_waitcnt vmcnt(0)""")
    g.label(L('exit'))
    g("s_endpgm")
    g.kernel_end(name, 128)
    return dict(lds=NS*32768)
```

```python
from common2 import *

NSLOT = 3

SEQ_DEFAULT = ["M1","e0","e1","e2","e3","M2","LK","e4","e5","e6","c0","c1","M3","e7","e8","e9","c2","c3","M4","LV","e10","e11","c4","e12","e13","c5","e14","e15","nop","c6","c7"]

def gen_att_role(g, L, P, sc1=False, sched=None, stamps=None, wait_fn=None, publish_fn=None, prio=None, prof=False, split=False, gate=True, stag=False, vmask=False, xs=(), dma_old=False, sync_hook=None, epi_prio=None, pre_publish=None, ready=None, post_issue=None, sc1_in=None, kstag=True, pair=False, swap_prio=None, n0=4):
    KR = 512 if pair else 256
    VO = 1024 + KR
    KVT = VO + 1344
    SLOT = 8 * KVT
    XCH = 2 * SLOT
    LDS_FLAG = XCH + 24576
    ATT_LDS = LDS_FLAG + 64
    NKP = 64 + KR // 16
    NP = NKP + 84
    SWS, SX, SG = P["SWS"], P["SX"], P["SG"]
    s_id, s_w = P["s_id"], P["s_w"]
    sfx = " sc1" if sc1 else ""
    sfi = sfx if sc1_in is None else (" sc1" if sc1_in else "")
    s_head, s_qb, s_qg, s_kh, s_t0, s_t1, s_t2 = 40, 41, 42, 43, 44, 45, 46
    s_m0, s_c, s_dlt, s_slot, s_fb, s_dslot, s_cc = 47, 48, 49, 50, 51, 52, 53
    v_lane = 1; T = [68, 69, 70, 71, 72, 73, 74, 75]
    Qm = [10, 14]; Qr = [18, 20]
    KmB, KrB = [22, 2], [26, 6]
    V0B, V1B = [28, 124], [32, 120]
    Km, Kr, V0, V1 = 22, 26, 28, 32
    Pp = [36, 44]; Sx = [52, 68]; O = [84, 100]
    aK, aR, aV = 116, 117, 118
    vd = [119, 8, 9]
    M = [36, 37]
    SEQ = sched or SEQ_DEFAULT
    g(f"""s_and_b32 {s(s_t0)}, {s(s_id)}, 7
    s_lshl_b32 {s(s_t0)}, {s(s_t0)}, 2
    s_bfe_u32 {s(s_t1)}, {s(s_id)}, 0x20003
    s_add_u32 {s(s_head)}, {s(s_t0)}, {s(s_t1)}
    s_lshr_b32 {s(s_qb)}, {s(s_id)}, 5
    s_and_b32 {s(s_qg)}, {s(s_w)}, 3
    s_lshr_b32 {s(s_kh)}, {s(s_w)}, 2
    s_mul_i32 {s(s_m0)}, {s(s_w)}, {KVT}
    s_mov_b32 {s(s_fb)}, 0""")
    gx, gw_ = Sx[0], Sx[0] + 8
    if gate:
        g(f"""s_lshl_b32 {s(s_t0)}, {s(s_qb)}, 8
        s_lshl_b32 {s(s_t1)}, {s(s_head)}, 3
        s_add_u32 {s(s_t0)}, {s(s_t0)}, {s(s_t1)}
        s_add_u32 {s(s_t0)}, {s(s_t0)}, {s(s_w)}
        s_mul_i32 {s(s_t1)}, {s(s_t0)}, 1280
        s_lshl_b32 {s(s_t2)}, {s(s_t0)}, 2
        s_add_u32 {s(s_t2)}, {s(s_t2)}, {WS_G2}
        v_lshlrev_b32 {v(T[1])}, 5, {v(v_lane)}""")
        for i in range(16): g(f"v_mov_b32 {v(gx+i)}, 0")
        g(f"""s_mov_b32 exec_hi, 0xff
        buffer_load_dwordx4 {vr(gx,4)}, {v(T[1])}, {sr(SX,4)}, {s(s_t1)} offen
        buffer_load_dwordx4 {vr(gx+4,4)}, {v(T[1])}, {sr(SX,4)}, {s(s_t1)} offen offset:16
        buffer_load_dwordx4 {vr(gw_,4)}, {v(T[1])}, {sr(SG,4)}, 0 offen
        buffer_load_dwordx4 {vr(gw_+4,4)}, {v(T[1])}, {sr(SG,4)}, 0 offen offset:16
        s_mov_b32 exec_hi, -1""")
    s_hb, s_rb = 54, 55
    if pair:
        g(f"""s_lshr_b32 {s(s_hb)}, {s(s_head)}, 1
        s_mul_i32 {s(s_hb)}, {s(s_hb)}, 2560
        s_add_u32 {s(s_rb)}, {s(s_hb)}, 2048
        s_and_b32 {s(s_t0)}, {s(s_head)}, 1
        s_lshl_b32 {s(s_t0)}, {s(s_t0)}, 10
        s_add_u32 {s(s_hb)}, {s(s_hb)}, {s(s_t0)}""")
    else:
        g(f"s_mul_i32 {s(s_hb)}, {s(s_head)}, 1280\ns_add_u32 {s(s_rb)}, {s(s_hb)}, 1024")
    g(f"""s_add_u32 {s(s_t0)}, {s(s_hb)}, {T_K}                    ; K base
    s_lshr_b32 {s(s_t1)}, {s(s_head)}, 3
    s_mul_i32 {s(s_t1)}, {s(s_t1)}, {V_GS}
    s_add_u32 {s(s_t1)}, {s(s_t1)}, {T_V}
    s_and_b32 {s(s_c)}, {s(s_head)}, 7
    s_mul_i32 {s(s_c)}, {s(s_c)}, 320                        ; 20*(head&7)*16
    v_lshlrev_b32 {v(vd[0])}, 4, {v(v_lane)}
    v_add_u32 {v(vd[0])}, {s(s_t0)}, {v(vd[0])}""")
    for j in (1, 2):
        g(f"""v_add_u32 {v(T[2])}, {64*j - NKP}, {v(v_lane)}
        v_max_i32 {v(T[3])}, 0, {v(T[2])}
        v_mul_u32_u24 {v(T[4])}, 3121, {v(T[3])}
        v_lshrrev_b32 {v(T[4])}, 16, {v(T[4])}                ; uh = q/21
        v_mul_u32_u24 {v(T[5])}, 21, {v(T[4])}
        v_sub_u32 {v(T[5])}, {v(T[3])}, {v(T[5])}             ; d
        v_mul_u32_u24 {v(T[4])}, 2560, {v(T[4])}
        v_lshl_add_u32 {v(T[4])}, {v(T[5])}, 4, {v(T[4])}
        v_add_u32 {v(T[4])}, {s(s_c)}, {v(T[4])}
        v_cmp_eq_u32 vcc, 20, {v(T[5])}
        v_mov_b32 {v(T[6])}, 10240
        s_nop 0
        v_cndmask_b32 {v(T[4])}, {v(T[4])}, {v(T[6])}, vcc
        v_add_u32 {v(vd[j])}, {s(s_t1)}, {v(T[4])}""")
        if j == 1:
            g(f"""v_lshlrev_b32 {v(T[6])}, 4, {v(v_lane)}
            v_add_u32 {v(T[6])}, {T_K}, {v(T[6])}
            v_add_u32 {v(T[6])}, {s(s_rb)}, {v(T[6])}
            v_cmp_gt_i32 vcc, 0, {v(T[2])}
            s_nop 1
            v_cndmask_b32 {v(vd[1])}, {v(vd[1])}, {v(T[6])}, vcc""")
        g(f"v_subrev_u32 {v(vd[j])}, {1024*j}, {v(vd[j])}")
    if ready: ready()
    if not gate:
        pass
    def dma(s_chunk, s_lds):
        g(f"""s_lshl_b32 {s(s_t2)}, {s(s_chunk)}, 3
        s_add_u32 {s(s_t2)}, {s(s_t2)}, {s(s_w)}
        s_mul_i32 {s(s_t2)}, {s(s_t2)}, {TSG}
        s_mov_b32 m0, {s(s_lds)}
        s_add_u32 {s(s_t2)}, {s(s_t2)}, {WS_T}
        buffer_load_dwordx4 {v(vd[0])}, {sr(SWS,4)}, {s(s_t2)} offen{sfi} lds
        buffer_load_dwordx4 {v(vd[1])}, {sr(SWS,4)}, {s(s_t2)} offen offset:1024{sfi} lds
        s_mov_b32 exec_hi, {(1 << (NP - 128 - 32)) - 1}
        buffer_load_dwordx4 {v(vd[2])}, {sr(SWS,4)}, {s(s_t2)} offen offset:2048{sfi} lds
        s_mov_b32 exec_hi, -1""")
    def next_cc():
        g(f"s_add_u32 {s(s_cc)}, {s(s_cc)}, 1\ns_and_b32 {s(s_cc)}, {s(s_cc)}, 7")
    def dma_first2():
        g(f"s_mov_b32 {s(s_cc)}, {s(s_qb) if kstag else 0}\ns_mov_b32 {s(s_t1)}, {s(s_m0)}")
        dma(s_cc, s_t1); next_cc()
        g(f"s_add_u32 {s(s_t1)}, {s(s_t1)}, {SLOT}")
        dma(s_cc, s_t1); next_cc()
    def _issue():
        if wait_fn: wait_fn(s_head, s_qb)
        if stamps: stamps(1)
        g(f"""s_lshl_b32 {s(s_t1)}, {s(s_qb)}, 3
        s_lshl_b32 {s(s_t2)}, {s(s_qg)}, 1
        s_add_u32 {s(s_t1)}, {s(s_t1)}, {s(s_t2)}
        s_mul_i32 {s(s_t1)}, {s(s_t1)}, {TSG}
        s_add_u32 {s(s_t1)}, {s(s_t1)}, {WS_T + T_Q}
        s_add_u32 {s(s_t0)}, {s(s_t1)}, {s(s_hb)}
        s_add_u32 {s(s_t2)}, {s(s_t1)}, {s(s_rb)}
        s_and_b32 {s(s_t1)}, {s(s_head)}, {1 if pair else 0}
        s_lshl_b32 {s(s_t1)}, {s(s_t1)}, 3
        s_add_u32 {s(s_t2)}, {s(s_t2)}, {s(s_t1)}
        v_lshlrev_b32 {v(T[0])}, {4 if pair else 3}, {v(v_lane)}
        v_lshlrev_b32 {v(T[1])}, 4, {v(v_lane)}""")
        for j in range(2): g(f"v_mov_b32 {v(Qr[j])}, 0\nv_mov_b32 {v(Qr[j]+1)}, 0")
        g(f"""s_add_u32 {s(s_t1)}, {s(s_t0)}, {TSG}
        buffer_load_dwordx4 {vr(Qm[0],4)}, {v(T[1])}, {sr(SWS,4)}, {s(s_t0)} offen{sfi}
        buffer_load_dwordx4 {vr(Qm[1],4)}, {v(T[1])}, {sr(SWS,4)}, {s(s_t1)} offen{sfi}
        s_add_u32 {s(s_t1)}, {s(s_t2)}, {TSG}
        s_mov_b32 exec_hi, 0
        buffer_load_dwordx2 {vr(Qr[0],2)}, {v(T[0])}, {sr(SWS,4)}, {s(s_t2)} offen{sfi}
        buffer_load_dwordx2 {vr(Qr[1],2)}, {v(T[0])}, {sr(SWS,4)}, {s(s_t1)} offen{sfi}
        s_mov_b32 exec_hi, -1""")
        dma_first2()

        if post_issue: post_issue()
    if not gate: _issue()
    g(f"""s_mul_i32 {s(s_t0)}, {s(s_kh)}, {n0*KVT}
    v_lshlrev_b32 {v(aK)}, 4, {v(v_lane)}
    v_add_u32 {v(aK)}, {s(s_t0)}, {v(aK)}
    v_and_b32 {v(T[0])}, 31, {v(v_lane)}
    v_lshrrev_b32 {v(T[1])}, 5, {v(v_lane)}
    v_lshlrev_b32 {v(aR)}, {4 if pair else 3}, {v(T[0])}
    s_and_b32 {s(s_t1)}, {s(s_head)}, {1 if pair else 0}
    s_lshl_b32 {s(s_t1)}, {s(s_t1)}, 3
    s_add_u32 {s(s_t1)}, {s(s_t1)}, 1024
    v_add_u32 {v(aR)}, {s(s_t1)}, {v(aR)}
    v_cmp_eq_u32 vcc, 1, {v(T[1])}
    v_mov_b32 {v(T[2])}, {VO + 320}
    s_nop 0
    v_cndmask_b32 {v(aR)}, {v(aR)}, {v(T[2])}, vcc
    v_add_u32 {v(aR)}, {s(s_t0)}, {v(aR)}
    v_min_u32 {v(T[2])}, 20, {v(T[0])}
    v_cmp_le_u32 vcc, 28, {v(T[0])}
    v_mul_u32_u24 {v(T[3])}, 21, {v(T[1])}
    s_nop 0
    v_cndmask_b32 {v(T[2])}, {v(T[2])}, 4, vcc
    v_add_u32 {v(T[2])}, {v(T[2])}, {v(T[3])}
    v_lshlrev_b32 {v(aV)}, 4, {v(T[2])}
    v_add_u32 {v(aV)}, {s(s_t0)}, {v(aV)}
    v_mov_b32 {v(T[4])}, 0
    v_mov_b32 {v(T[5])}, {LDS_FLAG}
    ds_write_b32 {v(T[5])}, {v(T[4])}""")
    if gate:
        acc = T[6]
        g(f"s_waitcnt vmcnt(0)\nv_mov_b32 {v(acc)}, 0")
        for i in range(8): g(f"v_dot2_f32_bf16 {v(acc)}, {v(gx+i)}, {v(gw_+i)}, {v(acc)}")
        g("s_nop 3")
        for dpp in ["row_shr:1", "row_shr:2", "row_shr:4", "row_shr:8", "row_bcast:15 row_mask:0xa", "row_bcast:31 row_mask:0xc"]:
            g(f"s_nop 1\nv_add_f32_dpp {v(acc)}, {v(acc)}, {v(acc)} {dpp} bank_mask:0xf" if "row_mask" in dpp else f"s_nop 1\nv_add_f32_dpp {v(acc)}, {v(acc)}, {v(acc)} {dpp} row_mask:0xf bank_mask:0xf bound_ctrl:0")
        g(f"""v_mul_f32 {v(acc)}, {f32hex(-1.4426950408889634)}, {v(acc)}
        v_exp_f32 {v(acc)}, {v(acc)}
        s_nop 0
        v_add_f32 {v(acc)}, 1.0, {v(acc)}
        v_rcp_f32 {v(acc)}, {v(acc)}
        v_mov_b32 {v(T[7])}, 0
        s_mov_b32 exec_lo, 0
        s_mov_b32 exec_hi, 0x80000000
        buffer_store_dword {v(acc)}, {v(T[7])}, {sr(SWS,4)}, {s(s_t2)} offen{sfx}
        s_mov_b64 exec, -1""")
    if gate: _issue()
    def qk16(dst, X, b=0): g(f"v_mfma_f32_32x32x16_bf16 {vr(Sx[dst],16)}, {vr(KmB[b],4)}, {vr(Qm[X],4)}, 0")
    def qk8(dst, X, b=0): g(f"v_mfma_f32_32x32x8_bf16 {vr(Sx[dst],16)}, {vr(KrB[b],2)}, {vr(Qr[X],2)}, {vr(Sx[dst],16)}")
    def pv(X, u, b=0): g(f"v_mfma_f32_32x32x16_bf16 {vr(O[X],16)}, {vr(V0B[b] if u == 0 else V1B[b],4)}, {vr(Pp[X]+4*u,4)}, {vr(O[X],16)}")
    def ldK(toff, b=0): g(f"ds_read_b128 {vr(KmB[b],4)}, {v(aK)} offset:{toff}\nds_read_b64 {vr(KrB[b],2)}, {v(aR)} offset:{toff}")
    def ldV(toff, b=0):
        if vmask: g("s_mov_b64 exec, s[82:83]")
        g(f"ds_read_b128 {vr(V0B[b],4)}, {v(aV)} offset:{toff+VO}\nds_read_b128 {vr(V1B[b],4)}, {v(aV)} offset:{toff+VO+672}")
        if vmask: g("s_mov_b64 exec, -1")
    def e(X, r): g(f"v_exp_f32 {v(Sx[X]+r)}, {v(Sx[X]+r)}")
    def cv(X, k): g(f"v_cvt_pk_bf16_f32 {v(Pp[X]+k)}, {v(Sx[X]+2*k)}, {v(Sx[X]+2*k+1)}")
    cnt = [0]
    def cs_sync():
        if "nosync" in xs: return
        if prof: g("s_memtime s[84:85]")
        g("s_waitcnt vmcnt(0)")
        if prof: g("s_memtime s[86:87]")
        g("s_barrier")
        if prof: g("s_memtime s[88:89]\ns_waitcnt lgkmcnt(0)\ns_sub_u32 s86, s86, s84\ns_add_u32 s90, s90, s86\ns_sub_u32 s88, s88, s84\ns_add_u32 s91, s91, s88")
        if sync_hook: sync_hook(s_c)
        g(f"""s_add_u32 {s(s_slot)}, {s(s_slot)}, {SLOT}
        s_cmp_ge_u32 {s(s_slot)}, {NSLOT*SLOT}
        s_cselect_b32 {s(s_slot)}, 0, {s(s_slot)}
        s_mov_b32 {s(s_dlt)}, {SLOT}
        s_cmov_b32 {s(s_dlt)}, {-(NSLOT-1)*SLOT}
        v_add_u32 {v(aK)}, {s(s_dlt)}, {v(aK)}
        v_add_u32 {v(aR)}, {s(s_dlt)}, {v(aR)}""")
    def cs_dma(kh=None):
        if "nodma" in xs: return
        if prof: g("s_memtime s[84:85]")
        cs_dma_(kh)
        if prof: g("s_memtime s[86:87]\ns_waitcnt lgkmcnt(0)\ns_sub_u32 s86, s86, s84\ns_add_u32 s79, s79, s86")
    def cs_dma_(kh=None):
        n = cnt[0]; cnt[0] += 1
        g(f"s_cmp_ge_u32 {s(s_c)}, 6\ns_cbranch_scc1 {L('nodma')}{n}")
        if kh is not None: g(f"s_cmp_lg_u32 {s(s_kh)}, {kh}\ns_cbranch_scc1 {L('nodma')}{n}")
        if dma_old and kh is None:
            g(f"s_cmp_lg_u32 {s(s_kh)}, 0\ns_cbranch_scc1 {L('nodma')}{n}")
            g(f"s_add_u32 {s(s_t1)}, {s(s_dslot)}, {s(s_m0)}")
            dma(s_cc, s_t1)
            g(f"""s_add_u32 {s(s_t2)}, {s(s_t2)}, {4*TSG}
            s_add_u32 m0, {s(s_t1)}, {4*KVT}
            s_nop 0
            buffer_load_dwordx4 {v(vd[0])}, {sr(SWS,4)}, {s(s_t2)} offen{sfi} lds
            buffer_load_dwordx4 {v(vd[1])}, {sr(SWS,4)}, {s(s_t2)} offen offset:1024{sfi} lds
            s_mov_b32 exec_hi, {(1 << (NP - 128 - 32)) - 1}
            buffer_load_dwordx4 {v(vd[2])}, {sr(SWS,4)}, {s(s_t2)} offen offset:2048{sfi} lds
            s_mov_b32 exec_hi, -1""")
            next_cc()
        else:
            g(f"s_add_u32 {s(s_t1)}, {s(s_dslot)}, {s(s_m0)}")
            dma(s_cc, s_t1); next_cc()
        g(f"""s_add_u32 {s(s_dslot)}, {s(s_dslot)}, {SLOT}
        s_cmp_ge_u32 {s(s_dslot)}, {NSLOT*SLOT}
        s_cselect_b32 {s(s_dslot)}, 0, {s(s_dslot)}""")
        g.label(f"{L('nodma')}{n}")
    def chunk_switch():
        cs_sync(); cs_dma()
    def phase(X, i, n=4, grp=None):
        Y = 1 - X
        waited = False
        for op in SEQ:
            if op in ("M1", "M3") and not waited:
                waited = True
                if X == 1 and "nolds" not in xs: g("s_waitcnt lgkmcnt(4)")
            if op == "M1":
                if "nomfma" not in xs: qk16(Y, Y, (i + X) & 1)
            elif op == "M2":
                if "nomfma" not in xs: qk8(Y, Y, (i + X) & 1)
            elif op == "M3":
                if "nomfma" not in xs: pv(Y, 0, (i + 1 - X) & 1)
            elif op == "M4":
                if "nomfma" not in xs: pv(Y, 1, (i + 1 - X) & 1)
            elif op == "LK":
                if X == 0:
                    if i == n - 2:
                        cs_sync()
                        if not (dma_old and grp == 1): cs_dma(0 if stag else None)
                    if i == n - 1 and stag: cs_dma(1)
                    if "nolds" not in xs: ldK(((i + 2) % n) * KVT, i & 1)
            elif op == "LV":
                if X == 0:
                    if i == n - 1: g(f"v_add_u32 {v(aV)}, {s(s_dlt)}, {v(aV)}")
                    if "nolds" not in xs: ldV(((i + 1) % n) * KVT, (i + 1) & 1)
            elif op == "nop": g("s_nop 0")
            elif op[0] == "e": e(X, int(op[1:]))
            elif op[0] == "c": cv(X, int(op[1:]))

    if prof: g("s_mov_b32 s90, 0\ns_mov_b32 s91, 0\ns_mov_b32 s79, 0")
    g.label(L('restart'))
    for X in range(2):
        for r in range(16): g(f"v_mov_b32 {v(O[X]+r)}, 0")
    for r in range(8): g(f"v_mov_b32 {v(Pp[1]+r)}, 0")
    for r in range(4): g(f"v_mov_b32 {v(V0B[1]+r)}, 0\nv_mov_b32 {v(V1B[1]+r)}, 0\nv_mov_b32 {v(V0B[0]+r)}, 0\nv_mov_b32 {v(V1B[0]+r)}, 0")
    if vmask: g("s_mov_b32 s82, 0x1fffff\ns_mov_b32 s83, 0x1fffff")
    g(f"""s_mov_b32 {s(s_c)}, 0
    s_mov_b32 {s(s_slot)}, 0
    s_mov_b32 {s(s_dslot)}, {2*SLOT}
    s_waitcnt vmcnt(3) lgkmcnt(0)
    s_barrier""")
    if stamps: stamps(2)
    ldK(0, 0); ldK(KVT, 1); ldV(0, 0)
    g("s_waitcnt lgkmcnt(4)")
    qk16(0, 0, 0); qk8(0, 0, 0)
    g("s_waitcnt lgkmcnt(0)\ns_nop 7\ns_nop 3")
    if prio is not None: g(f"s_setprio {prio}")
    if split:
        g(f"s_cmp_eq_u32 {s(s_kh)}, 0\ns_cbranch_scc1 {L('nosplit')}\ns_setprio {prio+2}")
        g.label(L('nosplit'))
    def loop_body(tag, n, grp):
        g.label(L('loop' + tag))
        for i in range(n):
            if swap_prio is not None and i in swap_prio:
                hi_kh = swap_prio[i]
                k_ = cnt[0]; cnt[0] += 1
                g(f"s_cmp_eq_u32 {s(s_kh)}, {hi_kh}\ns_cbranch_scc1 {L('sp')}{k_}\ns_setprio 1\ns_branch {L('sq')}{k_}")
                g.label(f"{L('sp')}{k_}"); g("s_setprio 2"); g.label(f"{L('sq')}{k_}")
            phase(0, i, n, grp); phase(1, i, n, grp)
        g(f"""s_add_u32 {s(s_c)}, {s(s_c)}, 1
        s_cmp_lt_u32 {s(s_c)}, 8
        s_cbranch_scc1 {L('loop' + tag)}""")
    if n0 == 4:
        loop_body("", 4, None)
    else:
        g(f"s_cmp_lg_u32 {s(s_kh)}, 0\ns_cbranch_scc1 {L('grp1')}")
        loop_body("a", n0, 0)
        g(f"s_branch {L('loopend')}")
        g.label(L('grp1'))
        loop_body("b", 8 - n0, 1)
        g.label(L('loopend'))
    if stamps: stamps(3)
    g("s_nop 1")
    pv(1, 0, 1); pv(1, 1, 1)
    g("s_waitcnt lgkmcnt(0)")
    if epi_prio is not None: g(f"s_setprio {epi_prio}")
    g(f"""s_mul_i32 {s(s_t0)}, {s(s_w)}, 3072
    s_add_u32 {s(s_t0)}, {s(s_t0)}, {XCH}
    v_lshlrev_b32 {v(T[0])}, 4, {v(v_lane)}
    v_add_u32 {v(T[1])}, {s(s_t0)}, {v(T[0])}
    s_xor_b32 {s(s_t1)}, {s(s_w)}, 4
    s_mul_i32 {s(s_t1)}, {s(s_t1)}, 3072
    s_add_u32 {s(s_t1)}, {s(s_t1)}, {XCH}
    v_add_u32 {v(T[2])}, {s(s_t1)}, {v(T[0])}
    s_nop 3
    s_cmp_eq_u32 {s(s_kh)}, 0
    s_cbranch_scc1 {L('kh0')}""")
    for q in range(3): g(f"ds_write_b128 {v(T[1])}, {vr(O[0]+4*q,4)} offset:{q*1024}")
    for r in range(12): g(f"v_mov_b32 {v(O[0]+r)}, {v(O[1]+r)}")
    g(f"s_branch {L('sent')}")
    g.label(L('kh0'))
    g("s_nop 7")
    for q in range(3): g(f"ds_write_b128 {v(T[1])}, {vr(O[1]+4*q,4)} offset:{q*1024}")
    g.label(L('sent'))
    R = Sx[0]
    g("s_waitcnt lgkmcnt(0)\ns_barrier")
    for q in range(3): g(f"ds_read_b128 {vr(R+4*q,4)}, {v(T[2])} offset:{q*1024}")
    g(f"""v_and_b32 {v(T[0])}, 31, {v(v_lane)}
    v_mul_u32_u24 {v(T[0])}, 48, {v(T[0])}
    v_lshrrev_b32 {v(T[1])}, 5, {v(v_lane)}
    v_lshl_add_u32 {v(T[0])}, {v(T[1])}, 3, {v(T[0])}
    s_lshl_b32 {s(s_t0)}, {s(s_w)}, 11
    s_add_u32 {s(s_t0)}, {s(s_t0)}, 24576
    v_add_u32 {v(T[0])}, {s(s_t0)}, {v(T[0])}
    v_lshlrev_b32 {v(T[2])}, 4, {v(v_lane)}
    v_add_u32 {v(T[1])}, {s(s_t0)}, {v(T[2])}
    s_lshl_b32 {s(s_t0)}, {s(s_qb)}, 8
    s_lshl_b32 {s(s_t1)}, {s(s_qg)}, 6
    s_add_u32 {s(s_t0)}, {s(s_t0)}, {s(s_t1)}
    s_lshl_b32 {s(s_t1)}, {s(s_kh)}, 5
    s_add_u32 {s(s_t0)}, {s(s_t0)}, {s(s_t1)}
    s_mul_i32 {s(s_t0)}, {s(s_t0)}, 48
    s_mul_i32 {s(s_t1)}, {s(s_head)}, {O_HS}
    s_add_u32 {s(s_t0)}, {s(s_t0)}, {s(s_t1)}
    s_add_u32 {s(s_t0)}, {s(s_t0)}, {WS_O2}
    s_waitcnt lgkmcnt(0)""")
    Fo = O[0]
    for r in range(12): g(f"v_add_f32 {v(Fo+r)}, {v(Fo+r)}, {v(R+r)}")
    g(f"""v_mov_b32 {v(T[3])}, {v(Fo+8)}
    v_mov_b32 {v(T[4])}, {v(Fo+8)}
    s_nop 1
    v_permlane32_swap_b32 {v(T[3])}, {v(T[4])}
    s_nop 1
    v_rcp_f32 {v(T[5])}, {v(T[4])}
    v_mov_b32 {v(T[6])}, 0""")
    for r in range(12): g(f"v_mul_f32 {v(Fo+r)}, {v(Fo+r)}, {v(T[5])}")
    for r in range(12): g(f"v_fma_f32 {v(T[6])}, {v(Fo+r)}, 0, {v(T[6])}")
    g(f"""s_mov_b32 exec_lo, 0
    v_mov_b32 {v(Fo+8)}, 0
    v_mov_b32 {v(Fo+9)}, 0
    v_mov_b32 {v(Fo+10)}, 0
    v_mov_b32 {v(Fo+11)}, 0
    s_mov_b32 exec_lo, -1""")
    for q in range(3):
        g(f"v_cvt_pk_bf16_f32 {v(R+2*q)}, {v(Fo+4*q)}, {v(Fo+4*q+1)}\nv_cvt_pk_bf16_f32 {v(R+2*q+1)}, {v(Fo+4*q+2)}, {v(Fo+4*q+3)}")
    g(f"""ds_write_b64 {v(T[0])}, {vr(R,2)}
    ds_write_b64 {v(T[0])}, {vr(R+2,2)} offset:16
    ds_write_b64 {v(T[0])}, {vr(R+4,2)} offset:32
    v_cmp_o_f32 vcc, {v(T[6])}, {v(T[6])}
    s_mov_b32 {s(s_t1)}, 0x21800000
    v_cmp_lt_f32 s[92:93], {s(s_t1)}, {v(T[4])}
    s_mov_b32 {s(s_t1)}, 0x5d800000
    v_cmp_gt_f32 s[94:95], {s(s_t1)}, {v(T[4])}
    s_waitcnt lgkmcnt(0)
    ds_read_b128 {vr(R+8,4)}, {v(T[1])}
    ds_read_b128 {vr(R+12,4)}, {v(T[1])} offset:1024
    s_and_b64 vcc, vcc, s[92:93]
    s_and_b64 vcc, vcc, s[94:95]
    s_cmp_eq_u64 vcc, -1
    s_cbranch_scc1 {L('ok')}
    v_mov_b32 {v(T[6])}, 1
    v_mov_b32 {v(T[7])}, {LDS_FLAG}
    ds_write_b32 {v(T[7])}, {v(T[6])}""")
    g.label(L('ok'))
    g(f"""s_waitcnt lgkmcnt(0)
    buffer_store_dwordx4 {vr(R+8,4)}, {v(T[2])}, {sr(SWS,4)}, {s(s_t0)} offen{sfx}
    s_mov_b32 exec_hi, 0
    buffer_store_dwordx4 {vr(R+12,4)}, {v(T[2])}, {sr(SWS,4)}, {s(s_t0)} offen offset:1024{sfx}
    s_mov_b32 exec_hi, -1
    v_mov_b32 {v(T[7])}, {LDS_FLAG}""")
    if pre_publish: pre_publish()
    g(f"""s_waitcnt vmcnt(0)
    s_barrier
    ds_read_b32 {v(T[6])}, {v(T[7])}
    s_waitcnt lgkmcnt(0)
    v_readfirstlane_b32 {s(s_t2)}, {v(T[6])}
    s_xor_b32 {s(s_t1)}, {s(s_fb)}, 1
    s_nop 2
    s_and_b32 {s(s_t2)}, {s(s_t2)}, {s(s_t1)}
    s_cmp_lg_u32 {s(s_t2)}, 0
    s_cbranch_scc1 {L('fallback')}""")
    if publish_fn: publish_fn(s_head, s_qb)
    g(f"s_branch {L('att_done')}")
    g.label(L('fallback'))
    g(f"s_mov_b32 {s(s_fb)}, 1")
    back = (8 % NSLOT) * SLOT
    def rewind():
        for a in (aK, aR, aV): g(f"v_subrev_u32 {v(a)}, {back}, {v(a)}")
    rewind()
    g("s_barrier")
    dma_first2()
    for X in range(2): g(f"v_mov_b32 {v(M[X])}, 0xff800000")
    g(f"""s_mov_b32 {s(s_c)}, 0
    s_mov_b32 {s(s_slot)}, 0
    s_mov_b32 {s(s_dslot)}, {2*SLOT}
    s_waitcnt vmcnt(3)
    s_barrier""")
    def mx_body(tag, n):
        g.label(L('mxloop' + tag))
        for i in range(n):
            ldK(i * KVT)
            g("s_waitcnt lgkmcnt(0)")
            for X in range(2):
                qk16(X, X); qk8(X, X)
            g("s_nop 15\ns_nop 7")
            for X in range(2):
                for r in range(0, 16, 2): g(f"v_max3_f32 {v(M[X])}, {v(M[X])}, {v(Sx[X]+r)}, {v(Sx[X]+r+1)}")
        chunk_switch()
        g(f"""v_add_u32 {v(aV)}, {s(s_dlt)}, {v(aV)}
        s_add_u32 {s(s_c)}, {s(s_c)}, 1
        s_cmp_lt_u32 {s(s_c)}, 8
        s_cbranch_scc1 {L('mxloop' + tag)}""")
    if n0 == 4:
        mx_body("", 4)
    else:
        g(f"s_cmp_lg_u32 {s(s_kh)}, 0\ns_cbranch_scc1 {L('mgrp1')}")
        mx_body("a", n0)
        g(f"s_branch {L('mxend')}")
        g.label(L('mgrp1'))
        mx_body("b", 8 - n0)
        g.label(L('mxend'))
    rewind()
    for X in range(2):
        g(f"""v_mov_b32 {v(T[0])}, {v(M[X])}
        v_mov_b32 {v(T[1])}, {v(M[X])}
        s_nop 1
        v_permlane32_swap_b32 {v(T[0])}, {v(T[1])}
        s_nop 1
        v_max_f32 {v(M[X])}, {v(T[0])}, {v(T[1])}""")
    g(f"""s_lshl_b32 {s(s_t0)}, {s(s_w)}, 9
    v_lshlrev_b32 {v(T[0])}, 3, {v(v_lane)}
    v_add_u32 {v(T[1])}, {s(s_t0)}, {v(T[0])}
    s_xor_b32 {s(s_t1)}, {s(s_w)}, 4
    s_lshl_b32 {s(s_t1)}, {s(s_t1)}, 9
    v_add_u32 {v(T[2])}, {s(s_t1)}, {v(T[0])}
    s_waitcnt vmcnt(0)
    s_barrier
    ds_write_b64 {v(T[1])}, {vr(M[0],2)}
    s_waitcnt lgkmcnt(0)
    s_barrier
    ds_read_b64 {vr(T[4],2)}, {v(T[2])}
    s_waitcnt lgkmcnt(0)
    v_max_f32 {v(M[0])}, {v(M[0])}, {v(T[4])}
    v_max_f32 {v(M[1])}, {v(M[1])}, {v(T[5])}
    s_barrier""")
    g("s_mov_b32 exec_lo, 0")
    for X in range(2):
        g(f"""v_xor_b32 {v(T[0])}, 0x80000000, {v(M[X])}
        v_and_b32 {v(T[1])}, 0xffff0000, {v(T[0])}
        v_sub_f32 {v(T[0])}, {v(T[0])}, {v(T[1])}
        v_and_b32 {v(T[2])}, 0xffff0000, {v(T[0])}
        v_sub_f32 {v(T[0])}, {v(T[0])}, {v(T[2])}
        v_lshrrev_b32 {v(T[1])}, 16, {v(T[1])}
        v_or_b32 {v(Qr[X])}, {v(T[1])}, {v(T[2])}
        v_lshrrev_b32 {v(Qr[X]+1)}, 16, {v(T[0])}""")
    g("s_mov_b32 exec_lo, -1")
    dma_first2()
    g(f"s_branch {L('restart')}")
    g.label(L('att_done'))
    return dict(lds=ATT_LDS)

def gen_att3(g, name="att_kernel", stamps=False, **kw):
    L = lambda x: f"{name}_{x}"
    g.kernel_start(name)
    P = dict(SX=4, SG=8, SWS=12, s_id=2, s_w=18)
    st = None
    if stamps:
        def st(k): g(f"s_memtime s[{60+2*k}:{61+2*k}]\ns_waitcnt lgkmcnt(0)" if k else f"s_memtime s[{60+2*k}:{61+2*k}]")
        st(0)
    g(f"s_cmp_ge_u32 s2, 256\ns_cbranch_scc1 {L('exit')}")
    g.srd(4, "ax"); g.srd(8, "gw"); g.srd(12, "ws")
    g(f"""v_lshrrev_b32 v2, 6, v0
    v_and_b32 v1, 63, v0
    v_readfirstlane_b32 s18, v2
    s_waitcnt lgkmcnt(0)""")
    g.srd_fin(4, "ax"); g.srd_fin(8, "gw"); g.srd_fin(12, "ws")
    info = gen_att_role(g, L, P, stamps=st, **kw)
    if stamps:
        g("s_waitcnt vmcnt(0)"); st(4)
        g(f"""s_mov_b64 exec, 1
        s_lshl_b32 s38, s2, 3
        s_add_u32 s38, s38, s18
        s_lshl_b32 s38, s38, 5
        s_add_u32 s38, s38, {WS_STAMP}
        v_mov_b32 v1, 0""")
        for k in range(5): g(f"v_mov_b32 v{8+k}, s{60+2*k}")
        g("v_mov_b32 v13, s90\nv_mov_b32 v14, s91\nv_mov_b32 v15, s79")
        g("buffer_store_dwordx4 v[8:11], v1, s[12:15], s38 offen\nbuffer_store_dwordx4 v[12:15], v1, s[12:15], s38 offen offset:16")
    g.label(L('exit'))
    g("s_endpgm")
    g.kernel_end(name, 128)
    return info
```

```python
from common2 import *

def gen_ffn1_role(g, L, P, sc1=False, skip=(), trace=False, epi_prio=None, pre_compute=None, loop_prio=None, ld_prio=None, post_first=None, setup_first=False, stagger=(4,5), publish_fn=None):
    NCH, NS = 20, 5
    SLOT = 8192 + 6144
    SX, SW, SB, SWS = P["SX"], P["SW1"], P["SB1"], P["SWS"]
    s_id, s_w = P["s_id"], P["s_w"]
    s_mt, s_nt, s_t0, s_t1, s_m0x, s_m0w, s_kx, s_kw, s_kc, s_lw, s_base = 40, 41, 42, 43, 44, 45, 46, 47, 48, 49, 51
    v_lane = 1
    g0 = g
    class _G:
        tr = False
        def __call__(self, line=""):
            keep = []
            for l in line.split("\n"):
                ls = l.strip()
                if "dma" in skip and ls.startswith("buffer_load_dwordx4") and ls.endswith("lds"): continue
                if "mfma" in skip and ls.startswith("v_mfma"): continue
                if "reads" in skip and ls.startswith("ds_read"): continue
                keep.append(l)
                if self.tr and (ls == "s_barrier" or ls.startswith("s_waitcnt vmcnt")):
                    keep.append("s_memtime s[56:57]\ns_waitcnt lgkmcnt(0)\nv_cmp_eq_u32 vcc, s55, v1\nv_mov_b32 v31, s56\ns_add_u32 s55, s55, 1\nv_cndmask_b32 v30, v30, v31, vcc")
            g0("\n".join(keep))
        def label(self, n): g0.label(n)
        def c(self, t): g0.c(t)
    g = _G()
    t0, t1, t2, t3 = 2, 3, 4, 5
    sfx = " sc1" if sc1 else ""
    g(f"""s_and_b32 {s(s_t0)}, {s(s_id)}, 7
    s_lshr_b32 {s(s_t1)}, {s(s_id)}, 3
    s_lshr_b32 {s(s_mt)}, {s(s_t0)}, 1
    s_lshl_b32 {s(s_mt)}, {s(s_mt)}, 2
    s_and_b32 {s(s_nt)}, {s(s_t1)}, 3
    s_add_u32 {s(s_mt)}, {s(s_mt)}, {s(s_nt)}
    s_and_b32 {s(s_nt)}, {s(s_t0)}, 1
    s_lshl_b32 {s(s_nt)}, {s(s_nt)}, 3
    s_lshr_b32 {s(s_t1)}, {s(s_t1)}, 2
    s_add_u32 {s(s_nt)}, {s(s_nt)}, {s(s_t1)}
    s_cmp_lt_u32 {s(s_w)}, 4
    s_cbranch_scc1 {L('f1c')}""")
    dx = [6, 7]; dw = [8, 9]
    g(f"""s_sub_u32 {s(s_lw)}, {s(s_w)}, 4
    v_lshrrev_b32 {v(t0)}, 2, {v(v_lane)}
    v_lshrrev_b32 {v(t1)}, 4, {v(v_lane)}
    v_sub_u32 {v(t1)}, 0, {v(t1)}
    v_and_b32 {v(t1)}, 3, {v(t1)}
    v_and_b32 {v(t2)}, 3, {v(v_lane)}
    v_xor_b32 {v(t2)}, {v(t2)}, {v(t1)}
    s_lshl_b32 {s(s_t0)}, {s(s_mt)}, 7
    s_lshl_b32 {s(s_t1)}, {s(s_lw)}, 5
    s_add_u32 {s(s_t0)}, {s(s_t0)}, {s(s_t1)}
    v_add_u32 {v(t0)}, {s(s_t0)}, {v(t0)}
    v_mul_u32_u24 {v(t0)}, 1280, {v(t0)}
    v_lshl_add_u32 {v(dx[0])}, {v(t2)}, 4, {v(t0)}
    v_add_u32 {v(dx[1])}, {16*1280-1024}, {v(dx[0])}
    s_mul_i32 {s(s_t0)}, {s(s_lw)}, 96""")
    for j in range(2):
        g(f"""v_add_u32 {v(t0)}, {s(s_t0)}, {v(v_lane)}
        v_add_u32 {v(t0)}, {64*j}, {v(t0)}
        v_mul_u32_u24 {v(t1)}, 5462, {v(t0)}
        v_lshrrev_b32 {v(t1)}, 16, {v(t1)}                ; row = P/12
        v_mul_u32_u24 {v(t2)}, 12, {v(t1)}
        v_sub_u32 {v(t2)}, {v(t0)}, {v(t2)}
        v_mul_u32_u24 {v(t1)}, 3072, {v(t1)}
        v_lshl_add_u32 {v(dw[j])}, {v(t2)}, 4, {v(t1)}
        s_mul_i32 {s(s_t1)}, {s(s_nt)}, 192
        s_sub_u32 {s(s_t1)}, {s(s_t1)}, {1024*j}
        v_add_u32 {v(dw[j])}, {s(s_t1)}, {v(dw[j])}""")
    d, step = stagger
    m = (65536 + d - 1) // d
    g(f"""s_lshl_b32 {s(s_m0x)}, {s(s_lw)}, 11
    s_mul_i32 {s(s_m0w)}, {s(s_lw)}, 1536
    s_add_u32 {s(s_m0w)}, {s(s_m0w)}, 8192
    s_add_u32 {s(s_kc)}, {s(s_mt)}, {s(s_nt)}
    s_mul_i32 {s(s_t0)}, {s(s_kc)}, {m}
    s_lshr_b32 {s(s_t0)}, {s(s_t0)}, 16
    s_mul_i32 {s(s_t0)}, {s(s_t0)}, {d}
    s_sub_u32 {s(s_kc)}, {s(s_kc)}, {s(s_t0)}
    s_mul_i32 {s(s_kc)}, {s(s_kc)}, {step}""")
    def dma(c):
        slot = c % NS
        g(f"""s_add_u32 m0, {s(s_m0x)}, {slot*SLOT}
        s_lshl_b32 {s(s_kx)}, {s(s_kc)}, 6
        s_mul_i32 {s(s_kw)}, {s(s_kc)}, {32*3072}
        buffer_load_dwordx4 {v(dx[0])}, {sr(SX,4)}, {s(s_kx)} offen lds
        buffer_load_dwordx4 {v(dx[1])}, {sr(SX,4)}, {s(s_kx)} offen offset:1024 lds
        s_add_u32 m0, {s(s_m0w)}, {slot*SLOT}
        s_add_u32 {s(s_kc)}, {s(s_kc)}, 1
        buffer_load_dwordx4 {v(dw[0])}, {sr(SW,4)}, {s(s_kw)} offen lds
        s_mov_b32 exec_hi, 0
        buffer_load_dwordx4 {v(dw[1])}, {sr(SW,4)}, {s(s_kw)} offen offset:1024 lds
        s_mov_b32 exec_hi, -1
        s_cmp_eq_u32 {s(s_kc)}, {NCH}
        s_cselect_b32 {s(s_kc)}, 0, {s(s_kc)}""")
    if trace:
        g("s_mov_b32 s55, 0\nv_mov_b32 v30, 0"); g.tr = True
    if post_first and setup_first: post_first()
    dma(0); dma(1)
    if post_first and not setup_first: post_first()
    if ld_prio is not None: g(f"s_setprio {ld_prio}")
    g("s_waitcnt vmcnt(4)\ns_barrier")
    dma(2); dma(3)
    g("s_mov_b32 s52, 3")
    g.label(L('f1ll'))
    for c in range(5):
        g("s_waitcnt vmcnt(8)\ns_barrier")
        dma(c + 4)
    g(f"s_sub_u32 s52, s52, 1\ns_cmp_lg_u32 s52, 0\ns_cbranch_scc1 {L('f1ll')}")
    g("s_waitcnt vmcnt(8)\ns_barrier")
    dma(19)
    g("s_waitcnt vmcnt(8)\ns_barrier")
    g("s_waitcnt vmcnt(4)\ns_barrier")
    g("s_waitcnt vmcnt(0)\ns_barrier")
    g("s_barrier")
    if ld_prio is not None: g("s_setprio 3")
    if trace:
        g.tr = False
        g(f"""s_lshl_b32 s54, {s(s_id)}, 2
        s_add_u32 s54, s54, {s(s_lw)}
        s_lshl_b32 s54, s54, 8
        s_add_u32 s54, s54, {WS_STAMP + 2097152}
        v_lshlrev_b32 v31, 2, v1
        buffer_store_dword v30, v31, {sr(SWS,4)}, s54 offen""")
    g(f"s_branch {L('f1done')}")
    g.label(L('f1c'))
    ax = [6, 7]; axh = [8, 9]; aw, awh = 10, 11
    XF = 12
    WF = 20
    BI = 32
    ACC = 56
    PK = 104
    RB = 112
    g(f"""s_mul_i32 {s(s_t0)}, {s(s_nt)}, 192
    v_lshrrev_b32 {v(t1)}, 5, {v(v_lane)}
    v_lshlrev_b32 {v(t0)}, 4, {v(t1)}                     ; h*16 bytes""")
    for t in range(3):
        for G in range(2):
            g(f"buffer_load_dwordx4 {vr(BI + 8*t + 4*G, 4)}, {v(t0)}, {sr(SB,4)}, {s(s_t0)} offen offset:{t*64 + G*32}")
    g(f"""v_and_b32 {v(t0)}, 31, {v(v_lane)}
    v_lshrrev_b32 {v(t2)}, 2, {v(t0)}
    v_sub_u32 {v(t2)}, 0, {v(t2)}
    v_and_b32 {v(t2)}, 3, {v(t2)}
    v_xor_b32 {v(t2)}, {v(t2)}, {v(t1)}
    v_lshlrev_b32 {v(t2)}, 4, {v(t2)}
    v_lshl_add_u32 {v(t0)}, {v(t0)}, 6, {v(t2)}
    s_lshl_b32 {s(s_t0)}, {s(s_w)}, 11
    v_add_u32 {v(ax[0])}, {s(s_t0)}, {v(t0)}
    v_xor_b32 {v(ax[1])}, 32, {v(ax[0])}
    v_add_u32 {v(axh[0])}, {3*SLOT}, {v(ax[0])}
    v_add_u32 {v(axh[1])}, {3*SLOT}, {v(ax[1])}
    v_lshrrev_b32 {v(t0)}, 5, {v(v_lane)}
    v_bfe_u32 {v(t2)}, {v(v_lane)}, 2, 2
    v_lshl_add_u32 {v(t0)}, {v(t0)}, 3, {v(t2)}
    v_mul_u32_u24 {v(t0)}, 192, {v(t0)}
    v_add_u32 {v(t0)}, 8192, {v(t0)}
    v_bfe_u32 {v(t1)}, {v(v_lane)}, 4, 1                  ; G
    v_lshlrev_b32 {v(aw)}, 5, {v(t1)}                     ; G*32 bytes
    v_and_b32 {v(t2)}, 1, {v(v_lane)}                     ; c&1
    v_lshl_add_u32 {v(aw)}, {v(t2)}, 4, {v(aw)}
    v_bfe_u32 {v(t2)}, {v(v_lane)}, 1, 1                  ; c>>1
    v_lshl_add_u32 {v(aw)}, {v(t2)}, 3, {v(aw)}
    v_add_u32 {v(aw)}, {v(aw)}, {v(t0)}
    v_add_u32 {v(awh)}, {3*SLOT}, {v(aw)}""")
    def reads_x(c, st):
        slot = c % NS; hi = slot >= 3; so = (slot - 3 if hi else slot) * SLOT
        g(f"ds_read_b128 {vr(XF + 4*st, 4)}, {v((axh if hi else ax)[st])} offset:{so}")
    def reads_w(c, st, t):
        slot = c % NS; hi = slot >= 3; so = (slot - 3 if hi else slot) * SLOT
        base = so + st*16*192 + 64*t
        a = awh if hi else aw
        g(f"ds_read_b64_tr_b16 {vr(WF+4*t,2)}, {v(a)} offset:{base}\nds_read_b64_tr_b16 {vr(WF+4*t+2,2)}, {v(a)} offset:{base+4*192}")
    if pre_compute: pre_compute(s_mt, s_nt)
    g("s_waitcnt vmcnt(0)")
    for t in range(3):
        for G in range(2):
            for q in range(8):
                bb = BI + 8*t + 4*G + q // 2
                if q % 2 == 0: g(f"v_lshlrev_b32 {v(ACC + 16*t + 8*G + q)}, 16, {v(bb)}")
                else: g(f"v_and_b32 {v(ACC + 16*t + 8*G + q)}, 0xffff0000, {v(bb)}")
    g("s_mov_b32 s52, 4")
    g("s_barrier")
    if loop_prio is not None: g(f"s_setprio {loop_prio}")
    reads_x(0, 0)
    for t in range(3): reads_w(0, 0, t)
    g.label(L('f1cl'))
    for c in range(5):
        for st in range(2):
            if st == 1: g("s_barrier")
            nc, ns_ = (c, 1) if st == 0 else (c + 1, 0)
            reads_x(nc, ns_)
            for t in range(3):
                g("s_waitcnt lgkmcnt(5)")
                a = ACC + 16*t
                g(f"v_mfma_f32_32x32x16_bf16 {vr(a,16)}, {vr(WF+4*t,4)}, {vr(XF+4*st,4)}, {vr(a,16)}")
                reads_w(nc, ns_, t)
    g(f"s_sub_u32 s52, s52, 1\ns_cmp_lg_u32 s52, 0\ns_cbranch_scc1 {L('f1cl')}")
    g("s_waitcnt lgkmcnt(0)")
    if epi_prio is not None: g(f"s_setprio {epi_prio}")
    g(f"""s_mul_i32 {s(s_t0)}, {s(s_w)}, 6144
    v_and_b32 {v(t0)}, 31, {v(v_lane)}
    v_lshlrev_b32 {v(t0)}, 6, {v(t0)}
    v_lshrrev_b32 {v(t1)}, 5, {v(v_lane)}
    v_lshl_add_u32 {v(t0)}, {v(t1)}, 4, {v(t0)}
    v_add_u32 {v(6)}, {s(s_t0)}, {v(t0)}
    v_lshlrev_b32 {v(7)}, 4, {v(v_lane)}
    v_add_u32 {v(8)}, {s(s_t0)}, {v(7)}
    s_mul_i32 {s(s_base)}, {s(s_nt)}, {3*131072}
    s_lshl_b32 {s(s_t0)}, {s(s_mt)}, 7
    s_lshl_b32 {s(s_t1)}, {s(s_w)}, 5
    s_add_u32 {s(s_t0)}, {s(s_t0)}, {s(s_t1)}
    s_lshl_b32 {s(s_t0)}, {s(s_t0)}, 6
    s_add_u32 {s(s_base)}, {s(s_base)}, {s(s_t0)}
    s_add_u32 {s(s_base)}, {s(s_base)}, {WS_H2}
    s_waitcnt vmcnt(0)
    s_nop 7""")
    for t in range(3):
        for G in range(2):
            a = ACC + 16*t + 8*G
            for q in range(8): g(f"v_max_f32 {v(a+q)}, 0, {v(a+q)}")
            for q in range(0, 8, 2): g(f"v_pk_mul_f32 {vr(a+q,2)}, {vr(a+q,2)}, {vr(a+q,2)}")
            p = PK + 4*G
            for q in range(4): g(f"v_cvt_pk_bf16_f32 {v(p+q)}, {v(a+2*q)}, {v(a+2*q+1)}")
            g(f"ds_write_b128 {v(6)}, {vr(p,4)} offset:{t*2048 + G*32}")
    g("s_waitcnt lgkmcnt(0)")
    for t in range(3):
        for j in range(2):
            r = 12 + 4*((2*t + j) % 6)
            g(f"ds_read_b128 {vr(r,4)}, {v(8)} offset:{t*2048 + j*1024}")
    for t in range(3):
        for j in range(2):
            r = 12 + 4*((2*t + j) % 6)
            g(f"s_waitcnt lgkmcnt({5 - (2*t + j)})")
            g(f"s_add_u32 {s(s_t0)}, {s(s_base)}, {t*131072 + j*1024}")
            g(f"buffer_store_dwordx4 {vr(r,4)}, {v(7)}, {sr(SWS,4)}, {s(s_t0)} offen{sfx}")
    g.label(L('f1done'))
    if publish_fn: publish_fn(s_mt, s_nt)
    return dict(lds=NS*SLOT)

def gen_ffn13(g, name="ffn1_kernel", **kw):
    L = lambda x: f"{name}_{x}"
    g.kernel_start(name)
    P = dict(SX=4, SW1=8, SWS=12, SB1=20, s_id=2, s_w=18)
    g(f"s_cmp_ge_u32 s2, 256\ns_cbranch_scc1 {L('exit')}")
    g.srd(4, "ax"); g.srd(8, "w1"); g.srd(12, "ws"); g.srd(20, "b1")
    g(f"""v_lshrrev_b32 v2, 6, v0
    v_and_b32 v1, 63, v0
    v_readfirstlane_b32 s18, v2
    s_waitcnt lgkmcnt(0)""")
    g.srd_fin(4, "ax"); g.srd_fin(8, "w1"); g.srd_fin(12, "ws"); g.srd_fin(20, "b1")
    info = gen_ffn1_role(g, L, P, **kw)
    g.label(L('exit'))
    g("s_endpgm")
    g.kernel_end(name, 128)
    return info
```

```python
from common2 import *

FIN_EARLY = {}
def gen_fin_role(g, L, P, sc1=False, skip=(), trace=False, loop_prio=None, ld_prio=None, wo_pf=True, early=False, early_only=False, dyn=None, lsplit=None, wait_h=None, wait_o=None, stamps=None):
    NS, SLOT = 4, 8192 + 10240
    NCH = 24
    SLF, NSF, NCF = 12288 + 12800, 3, 8
    SW2, SWO, SB2, SOUT, SWS = P["SW2"], P["SWO"], P["SB2"], P["SOUT"], P["SWS"]
    s_id, s_w = P["s_id"], P["s_w"]
    s_mb, s_ct, s_t0, s_t1, s_m0x, s_m0w, s_kx, s_kw, s_kc, s_lw, s_ox = 40, 41, 42, 43, 44, 45, 46, 47, 48, 49, 50
    if early_only: s_mb, s_ct, s_t0, s_t1, s_lw = 88, 89, 90, 91, 92
    v_lane = 1
    g0 = g
    class _G:
        tr = False
        def __call__(self, line=""):
            keep = []
            for l in line.split("\n"):
                ls = l.strip()
                if "dma" in skip and ls.startswith("buffer_load_dwordx4") and ls.endswith("lds"): continue
                if "mfma" in skip and ls.startswith("v_mfma"): continue
                if "reads" in skip and ls.startswith("ds_read"): continue
                if "halfreads" in skip and ls.startswith("ds_read_b64_tr"):
                    self.cnt = getattr(self, "cnt", 0) + 1
                    if self.cnt % 2 == 0: continue
                if "halfreads" in skip and ls.startswith("s_waitcnt lgkmcnt(11)"): l = l.replace("lgkmcnt(11)", "lgkmcnt(6)")
                keep.append(l)
                if self.tr and (ls == "s_barrier" or ls.startswith("s_waitcnt vmcnt")):
                    keep.append("s_memtime s[56:57]\ns_waitcnt lgkmcnt(0)\nv_cmp_eq_u32 vcc, s55, v1\nv_mov_b32 v31, s56\ns_add_u32 s55, s55, 1\nv_cndmask_b32 v30, v30, v31, vcc")
            g0("\n".join(keep))
        def label(self, n): g0.label(n)
        def c(self, t): g0.c(t)
    g = _G()
    t0, t1, t2, t3 = 2, 3, 4, 5
    sfx = " sc1" if sc1 else ""
    g(f"""s_and_b32 {s(s_t0)}, {s(s_id)}, 7
    s_lshr_b32 {s(s_t1)}, {s(s_id)}, 3
    s_lshr_b32 {s(s_mb)}, {s(s_t0)}, 1
    s_lshl_b32 {s(s_mb)}, {s(s_mb)}, 3
    s_and_b32 {s(s_ct)}, {s(s_t1)}, 7
    s_add_u32 {s(s_mb)}, {s(s_mb)}, {s(s_ct)}
    s_and_b32 {s(s_ct)}, {s(s_t0)}, 1
    s_lshl_b32 {s(s_ct)}, {s(s_ct)}, 2
    s_lshr_b32 {s(s_t1)}, {s(s_t1)}, 3
    s_add_u32 {s(s_ct)}, {s(s_ct)}, {s(s_t1)}""")
    E_AX, E_AW, E_FX, E_FW2, E_OFF, E_G, E_B2 = 112, 113, 114, 115, 116, 117, 118
    def compute_setup_early():
        g(f"""s_lshl_b32 {s(s_t0)}, {s(s_mb)}, 6
        s_lshl_b32 {s(s_t1)}, {s(s_w)}, 4
        s_add_u32 {s(s_t0)}, {s(s_t0)}, {s(s_t1)}
        v_and_b32 {v(t0)}, 15, {v(v_lane)}
        v_add_u32 {v(t0)}, {s(s_t0)}, {v(t0)}                  ; token
        v_mul_u32_u24 {v(E_OFF)}, 1280, {v(t0)}
        v_lshlrev_b32 {v(E_G)}, 2, {v(t0)}
        v_lshrrev_b32 {v(t1)}, 4, {v(v_lane)}                  ; q
        v_lshlrev_b32 {v(t2)}, 3, {v(t1)}
        s_mul_i32 {s(s_t0)}, {s(s_ct)}, 160
        v_add_u32 {v(t2)}, {s(s_t0)}, {v(t2)}
        v_add_u32 {v(E_OFF)}, {v(E_OFF)}, {v(t2)}""")
        g(f"v_mov_b32 {v(E_B2)}, {v(t2)}")
        g(f"""v_and_b32 {v(t0)}, 15, {v(v_lane)}
        v_lshrrev_b32 {v(t2)}, 2, {v(t0)}
        v_sub_u32 {v(t2)}, 0, {v(t2)}
        v_and_b32 {v(t2)}, 3, {v(t2)}
        v_xor_b32 {v(t2)}, {v(t2)}, {v(t1)}
        v_lshlrev_b32 {v(t2)}, 4, {v(t2)}
        v_lshl_add_u32 {v(t2)}, {v(t0)}, 6, {v(t2)}
        s_lshl_b32 {s(s_t0)}, {s(s_w)}, 10
        v_add_u32 {v(E_AX)}, {s(s_t0)}, {v(t2)}
        v_lshrrev_b32 {v(t2)}, 1, {v(t1)}
        v_lshlrev_b32 {v(t2)}, 4, {v(t2)}
        v_and_b32 {v(t3)}, 1, {v(t1)}
        v_lshl_add_u32 {v(t2)}, {v(t3)}, 2, {v(t2)}
        v_bfe_u32 {v(t3)}, {v(v_lane)}, 2, 2
        v_add_u32 {v(t2)}, {v(t2)}, {v(t3)}                    ; row
        v_mul_u32_u24 {v(t2)}, 160, {v(t2)}
        v_and_b32 {v(t3)}, 3, {v(v_lane)}
        v_lshl_add_u32 {v(t2)}, {v(t3)}, 3, {v(t2)}
        v_add_u32 {v(E_AW)}, 8192, {v(t2)}
        v_mul_u32_u24 {v(E_FX)}, 3072, {v(t1)}
        v_mul_u32_u24 {v(t0)}, 48, {v(t0)}
        v_add_u32 {v(E_FX)}, {v(E_FX)}, {v(t0)}
        s_mul_i32 {s(s_t0)}, {s(s_w)}, {16*48}
        v_add_u32 {v(E_FX)}, {s(s_t0)}, {v(E_FX)}
        v_bfe_u32 {v(t0)}, {v(v_lane)}, 2, 2
        v_lshl_add_u32 {v(t0)}, {v(t1)}, 2, {v(t0)}
        v_add_u32 {v(t0)}, 64, {v(t0)}
        v_mul_u32_u24 {v(t0)}, 160, {v(t0)}
        v_lshl_add_u32 {v(t0)}, {v(t3)}, 3, {v(t0)}
        v_add_u32 {v(E_FW2)}, 12288, {v(t0)}""")
    def final_loop(tag, tiles, FRb, ACC_, fx, fw, fw2, fxn, fwn, fw2n, loader):
        nt_ = len(tiles)
        BS = 4 + 4*nt_
        def readsF(j, buf, nxt=False):
            b = FRb + BS*buf
            ax_, aw_, aw2_ = (fxn, fwn, fw2n) if nxt else (fx, fw, fw2)
            g(f"ds_read_b128 {vr(b,4)}, {v(ax_)} offset:{j*16}")
            for i, t in enumerate(tiles):
                if j < 2:
                    base = j*32*160 + t*32
                    g(f"ds_read_b64_tr_b16 {vr(b+4+4*i,2)}, {v(aw_)} offset:{base}\nds_read_b64_tr_b16 {vr(b+6+4*i,2)}, {v(aw_)} offset:{base+1280}")
                else:
                    g(f"ds_read_b64_tr_b16 {vr(b+4+4*i,2)}, {v(aw2_)} offset:{t*32}")
        def mfF(buf):
            b = FRb + BS*buf
            for i in range(nt_):
                g(f"v_mfma_f32_16x16x32_bf16 {vr(ACC_+4*i,4)}, {vr(b+4+4*i,4)}, {vr(b,4)}, {vr(ACC_+4*i,4)}")
        n01, n2 = 1 + 2*nt_, 1 + nt_
        g(f"s_mov_b32 s52, 0\ns_mov_b32 s53, 0")
        readsF(0, 0)
        buf = 0
        g.label(L('f3cl' + tag))
        for half in range(2):
            g(f"""s_add_u32 s53, s53, {SLF}
            s_cmp_ge_u32 s53, {NSF*SLF}
            s_cselect_b32 s53, 0, s53
            s_mov_b32 s54, {SLF}
            s_cmov_b32 s54, {-(NSF-1)*SLF}
            v_add_u32 {v(fxn)}, s54, {v(fx)}
            v_add_u32 {v(fwn)}, s54, {v(fw)}
            v_add_u32 {v(fw2n)}, s54, {v(fw2)}""")
            for j in range(3):
                if j == 2:
                    if loader:
                        lb = f"{tag}{half}"
                        g(f"""s_cmp_eq_u32 s52, 0
                        s_cbranch_scc1 {L('w3' + lb)}
                        s_cmp_le_u32 s52, 5
                        s_cbranch_scc1 {L('w7' + lb)}
                        s_waitcnt vmcnt(0)
                        s_branch {L('wd' + lb)}""")
                        g.label(L('w3' + lb)); g(f"s_waitcnt vmcnt(3)\ns_branch {L('wd' + lb)}")
                        g.label(L('w7' + lb)); g("s_waitcnt vmcnt(7)")
                        g.label(L('wd' + lb))
                    g("s_waitcnt lgkmcnt(0)\ns_barrier")
                    if loader:
                        g(f"s_cmp_gt_u32 s52, 4\ns_cbranch_scc1 {L('nd' + lb)}")
                        final_loop.dma()
                        g.label(L('nd' + lb))
                        g(f"""s_add_u32 s55, s55, {SLF}
                        s_cmp_ge_u32 s55, {NSF*SLF}
                        s_cselect_b32 s55, 0, s55""")
                if j < 2: readsF(j + 1, buf ^ 1)
                else: readsF(0, buf ^ 1, nxt=True)
                g(f"s_waitcnt lgkmcnt({n2 if j == 1 else n01})")
                mfF(buf)
                buf ^= 1
            g(f"v_mov_b32 {v(fx)}, {v(fxn)}\nv_mov_b32 {v(fw)}, {v(fwn)}\nv_mov_b32 {v(fw2)}, {v(fw2n)}\ns_add_u32 s52, s52, 1")
        g(f"s_cmp_lt_u32 s52, 8\ns_cbranch_scc1 {L('f3cl' + tag)}")
        g("s_waitcnt lgkmcnt(0)")
    def final_addr(fx, fw, fw2, s_wave):
        g(f"""v_and_b32 {v(t0)}, 15, {v(v_lane)}
        v_lshrrev_b32 {v(t1)}, 4, {v(v_lane)}                  ; q
        v_lshrrev_b32 {v(t2)}, 1, {v(t1)}
        v_lshlrev_b32 {v(t2)}, 4, {v(t2)}
        v_and_b32 {v(t3)}, 1, {v(t1)}
        v_lshl_add_u32 {v(t2)}, {v(t3)}, 2, {v(t2)}
        v_bfe_u32 {v(t3)}, {v(v_lane)}, 2, 2
        v_add_u32 {v(t2)}, {v(t2)}, {v(t3)}
        v_mul_u32_u24 {v(t2)}, 160, {v(t2)}
        v_and_b32 {v(t3)}, 3, {v(v_lane)}
        v_lshl_add_u32 {v(t2)}, {v(t3)}, 3, {v(t2)}
        v_add_u32 {v(fw)}, 12288, {v(t2)}
        v_mul_u32_u24 {v(fx)}, 3072, {v(t1)}
        v_mul_u32_u24 {v(t0)}, 48, {v(t0)}
        v_add_u32 {v(fx)}, {v(fx)}, {v(t0)}
        s_mul_i32 {s(s_t0)}, {s(s_wave)}, {16*48}
        v_add_u32 {v(fx)}, {s(s_t0)}, {v(fx)}
        v_bfe_u32 {v(t0)}, {v(v_lane)}, 2, 2
        v_lshl_add_u32 {v(t0)}, {v(t1)}, 2, {v(t0)}
        v_add_u32 {v(t0)}, 64, {v(t0)}
        v_mul_u32_u24 {v(t0)}, 160, {v(t0)}
        v_lshl_add_u32 {v(t0)}, {v(t3)}, 3, {v(t0)}
        v_add_u32 {v(fw2)}, 12288, {v(t0)}""")
    dx = 40; dw = [41, 42, 43]; dwo = [44, 45, 46, 47]; dxo = 48
    def loader_setup():
        g(f"""s_sub_u32 {s(s_lw)}, {s(s_w)}, 4
        v_lshrrev_b32 {v(t0)}, 2, {v(v_lane)}
        v_lshrrev_b32 {v(t1)}, 4, {v(v_lane)}
        v_sub_u32 {v(t1)}, 0, {v(t1)}
        v_and_b32 {v(t1)}, 3, {v(t1)}
        v_and_b32 {v(t2)}, 3, {v(v_lane)}
        v_xor_b32 {v(t2)}, {v(t2)}, {v(t1)}
        s_lshl_b32 {s(s_t0)}, {s(s_mb)}, 6
        s_and_b32 {s(s_t1)}, {s(s_lw)}, 1
        s_lshl_b32 {s(s_t1)}, {s(s_t1)}, 5
        s_add_u32 {s(s_t0)}, {s(s_t0)}, {s(s_t1)}
        v_add_u32 {v(t0)}, {s(s_t0)}, {v(t0)}                  ; row
        v_lshlrev_b32 {v(t0)}, 6, {v(t0)}
        v_lshl_add_u32 {v(dx)}, {v(t2)}, 4, {v(t0)}
        s_lshr_b32 {s(s_t0)}, {s(s_lw)}, 1
        s_lshl_b32 {s(s_t0)}, {s(s_t0)}, 17
        v_add_u32 {v(dx)}, {s(s_t0)}, {v(dx)}
        s_mul_i32 {s(s_t0)}, {s(s_lw)}, 160""")
        for j in range(3):
            g(f"""v_add_u32 {v(t0)}, {s(s_t0)}, {v(v_lane)}
            v_add_u32 {v(t0)}, {64*j}, {v(t0)}
            v_mul_u32_u24 {v(t1)}, 6554, {v(t0)}
            v_lshrrev_b32 {v(t1)}, 16, {v(t1)}                ; rho = P/10
            v_mul_u32_u24 {v(t2)}, 10, {v(t1)}
            v_sub_u32 {v(t2)}, {v(t0)}, {v(t2)}               ; cp
            v_and_b32 {v(t0)}, 0x33, {v(t1)}
            v_and_b32 {v(t3)}, 4, {v(t1)}
            v_lshl_or_b32 {v(t0)}, {v(t3)}, 1, {v(t0)}
            v_and_b32 {v(t3)}, 8, {v(t1)}
            v_lshrrev_b32 {v(t3)}, 1, {v(t3)}
            v_or_b32 {v(t0)}, {v(t0)}, {v(t3)}                ; k
            v_mul_u32_u24 {v(t1)}, 1280, {v(t0)}
            v_lshl_add_u32 {v(dw[j])}, {v(t2)}, 4, {v(t1)}
            s_mul_i32 {s(s_t1)}, {s(s_ct)}, 160
            s_sub_u32 {s(s_t1)}, {s(s_t1)}, {1024*j}
            v_add_u32 {v(dw[j])}, {s(s_t1)}, {v(dw[j])}""")
        g(f"s_mul_i32 {s(s_t0)}, {s(s_lw)}, 200")
        for j in range(4):
            g(f"""v_add_u32 {v(t0)}, {s(s_t0)}, {v(v_lane)}
            v_add_u32 {v(t0)}, {64*j}, {v(t0)}
            v_mul_u32_u24 {v(t1)}, 6554, {v(t0)}
            v_lshrrev_b32 {v(t1)}, 16, {v(t1)}                ; rho'
            v_mul_u32_u24 {v(t2)}, 10, {v(t1)}
            v_sub_u32 {v(t2)}, {v(t0)}, {v(t2)}               ; cp
            v_bfe_u32 {v(t0)}, {v(t1)}, 4, 1
            v_bfe_u32 {v(t3)}, {v(t1)}, 2, 1
            v_lshl_add_u32 {v(t0)}, {v(t0)}, 1, {v(t3)}       ; q
            v_mul_u32_u24 {v(t0)}, 20, {v(t0)}
            v_bfe_u32 {v(t3)}, {v(t1)}, 3, 1
            v_lshl_add_u32 {v(t0)}, {v(t3)}, 2, {v(t0)}
            v_and_b32 {v(t3)}, 3, {v(t1)}
            v_add_u32 {v(t0)}, {v(t0)}, {v(t3)}
            v_bfe_u32 {v(t3)}, {v(t1)}, 5, 1
            v_lshl_add_u32 {v(t0)}, {v(t3)}, 3, {v(t0)}       ; + 8j
            v_bfe_u32 {v(t3)}, {v(t1)}, 2, 2
            v_mul_u32_u24 {v(t3)}, 20, {v(t3)}
            v_and_b32 {v(dwo[j])}, 3, {v(t1)}
            v_add_u32 {v(t3)}, {v(t3)}, {v(dwo[j])}
            v_add_u32 {v(t3)}, 16, {v(t3)}
            v_cmp_le_u32 vcc, 64, {v(t1)}
            s_nop 1
            v_cndmask_b32 {v(t0)}, {v(t0)}, {v(t3)}, vcc
            v_mul_u32_u24 {v(t1)}, 1280, {v(t0)}
            v_lshl_add_u32 {v(dwo[j])}, {v(t2)}, 4, {v(t1)}
            s_mul_i32 {s(s_t1)}, {s(s_ct)}, 160
            s_sub_u32 {s(s_t1)}, {s(s_t1)}, {1024*j}
            v_add_u32 {v(dwo[j])}, {s(s_t1)}, {v(dwo[j])}""")
        g(f"v_lshlrev_b32 {v(dxo)}, 4, {v(v_lane)}")
    if early_only == "loader":
        loader_setup(); return None
    if early_only == "compute":
        compute_setup_early(); return None
    g(f"s_cmp_lt_u32 {s(s_w)}, 4\ns_cbranch_scc1 {L('f2c')}")
    if not early: loader_setup()
    else: g(f"s_sub_u32 {s(s_lw)}, {s(s_w)}, 4")
    early = (early is True)
    g(f"""s_lshl_b32 {s(s_m0x)}, {s(s_lw)}, 11
    s_mul_i32 {s(s_m0w)}, {s(s_lw)}, 2560
    s_add_u32 {s(s_m0w)}, {s(s_m0w)}, 8192
    s_add_u32 {s(s_kc)}, {s(s_mb)}, {s(s_ct)}
    s_mul_i32 {s(s_kc)}, {s(s_kc)}, 3
    s_cmp_ge_u32 {s(s_kc)}, 96
    s_cselect_b32 {s(s_t0)}, 96, 0
    s_sub_u32 {s(s_kc)}, {s(s_kc)}, {s(s_t0)}
    s_cmp_ge_u32 {s(s_kc)}, 48
    s_cselect_b32 {s(s_t0)}, 48, 0
    s_sub_u32 {s(s_kc)}, {s(s_kc)}, {s(s_t0)}
    s_cmp_ge_u32 {s(s_kc)}, 24
    s_cselect_b32 {s(s_t0)}, 24, 0
    s_sub_u32 {s(s_kc)}, {s(s_kc)}, {s(s_t0)}""")
    if wait_h: wait_h(s_mb, loader=True)
    def dma(c):
        slot = c % NS
        g(f"""s_add_u32 m0, {s(s_m0x)}, {slot*SLOT}
        s_lshl_b32 {s(s_kx)}, {s(s_kc)}, 18
        s_add_u32 {s(s_kx)}, {s(s_kx)}, {WS_H2}
        s_mul_i32 {s(s_kw)}, {s(s_kc)}, {64*1280}
        buffer_load_dwordx4 {v(dx)}, {sr(SWS,4)}, {s(s_kx)} offen{sfx} lds
        buffer_load_dwordx4 {v(dx)}, {sr(SWS,4)}, {s(s_kx)} offen offset:1024{sfx} lds
        s_add_u32 m0, {s(s_m0w)}, {slot*SLOT}
        s_add_u32 {s(s_kc)}, {s(s_kc)}, 1
        buffer_load_dwordx4 {v(dw[0])}, {sr(SW2,4)}, {s(s_kw)} offen lds
        buffer_load_dwordx4 {v(dw[1])}, {sr(SW2,4)}, {s(s_kw)} offen offset:1024 lds
        s_mov_b32 exec_hi, 0
        buffer_load_dwordx4 {v(dw[2])}, {sr(SW2,4)}, {s(s_kw)} offen offset:2048 lds
        s_mov_b32 exec_hi, -1
        s_cmp_eq_u32 {s(s_kc)}, {NCH}
        s_cselect_b32 {s(s_kc)}, 0, {s(s_kc)}""")
    if trace:
        g("s_mov_b32 s55, 0\nv_mov_b32 v30, 0"); g.tr = True
    dma(0); dma(1)
    if ld_prio is not None: g(f"s_setprio {ld_prio}")
    g("s_waitcnt vmcnt(5)\ns_barrier")
    dma(2)
    g("s_mov_b32 s52, 5")
    g.label(L('f2ll'))
    for c in range(4):
        g("s_waitcnt vmcnt(5)\ns_barrier")
        dma(c + 3)
    g(f"s_sub_u32 s52, s52, 1\ns_cmp_lg_u32 s52, 0\ns_cbranch_scc1 {L('f2ll')}")
    g("s_waitcnt vmcnt(5)\ns_barrier")
    dma(23)
    g("s_waitcnt vmcnt(5)\ns_barrier")
    g("s_waitcnt vmcnt(0)\ns_barrier")
    g("s_barrier")
    if ld_prio is not None: g("s_setprio 3")
    if trace:
        g.tr = False
        g(f"""s_lshl_b32 s54, {s(s_id)}, 2
        s_add_u32 s54, s54, {s(s_lw)}
        s_lshl_b32 s54, s54, 8
        s_add_u32 s54, s54, {WS_STAMP + 3145728}
        v_lshlrev_b32 v31, 2, v1
        buffer_store_dword v30, v31, {sr(SWS,4)}, s54 offen""")
    g("s_barrier")
    g(f"""s_add_u32 {s(s_kc)}, {s(s_mb)}, {s(s_ct)}
    s_and_b32 {s(s_kc)}, {s(s_kc)}, 7
    s_mul_i32 {s(s_m0x)}, {s(s_lw)}, 3072
    s_mul_i32 {s(s_m0w)}, {s(s_lw)}, 3200
    s_add_u32 {s(s_m0w)}, {s(s_m0w)}, 12288
    s_mul_i32 {s(s_ox)}, {s(s_lw)}, {O_HS}
    s_mul_i32 {s(s_t0)}, {s(s_mb)}, 3072
    s_add_u32 {s(s_ox)}, {s(s_ox)}, {s(s_t0)}
    s_add_u32 {s(s_ox)}, {s(s_ox)}, {WS_O2}""")
    def kadd(n):
        g(f"s_add_u32 {s(s_t0)}, {s(s_kc)}, {n}\ns_and_b32 {s(s_t0)}, {s(s_t0)}, 7")
    def dma_w(c):
        slot = c % NSF
        kadd(c)
        g(f"""s_add_u32 m0, {s(s_m0w)}, {slot*SLF}
        s_mul_i32 {s(s_kw)}, {s(s_t0)}, {80*1280}""")
        for j in range(3): g(f"buffer_load_dwordx4 {v(dwo[j])}, {sr(SWO,4)}, {s(s_kw)} offen offset:{1024*j} lds")
        g(f"""s_mov_b64 exec, 0xff
        buffer_load_dwordx4 {v(dwo[3])}, {sr(SWO,4)}, {s(s_kw)} offen offset:3072 lds
        s_mov_b64 exec, -1""")
    def dma_x(c):
        slot = c % NSF
        kadd(c)
        g(f"""s_add_u32 m0, {s(s_m0x)}, {slot*SLF}
        s_mul_i32 {s(s_kx)}, {s(s_t0)}, {4*O_HS}
        s_add_u32 {s(s_kx)}, {s(s_kx)}, {s(s_ox)}""")
        for j in range(3): g(f"buffer_load_dwordx4 {v(dxo)}, {sr(SWS,4)}, {s(s_kx)} offen offset:{1024*j}{sfx} lds")
    ORD = NSF * SLF
    if dyn is None:
        for c in range(3): dma_w(c)
    if wo_pf or dyn is not None:
        for c in range(0 if dyn is not None else 3, NCF):
            kadd(c)
            g(f"s_mul_i32 {s(s_kw)}, {s(s_t0)}, {80*1280}")
            for j in range(3): g(f"buffer_load_dword v20, {v(dwo[j])}, {sr(SWO,4)}, {s(s_kw)} offen offset:{1024*j}")
            g(f"""s_mov_b64 exec, 0xff
            buffer_load_dword v20, {v(dwo[3])}, {sr(SWO,4)}, {s(s_kw)} offen offset:3072
            s_mov_b64 exec, -1""")
    if dyn is None and lsplit:
        def dma_wx_dyn():
            g(f"""s_add_u32 {s(s_t0)}, {s(s_kc)}, s52
            s_add_u32 {s(s_t0)}, {s(s_t0)}, 3
            s_and_b32 {s(s_t0)}, {s(s_t0)}, 7
            s_add_u32 m0, {s(s_m0w)}, s55
            s_mul_i32 {s(s_kw)}, {s(s_t0)}, {80*1280}""")
            for j in range(3): g(f"buffer_load_dwordx4 {v(dwo[j])}, {sr(SWO,4)}, {s(s_kw)} offen offset:{1024*j} lds")
            g(f"""s_mov_b64 exec, 0xff
            buffer_load_dwordx4 {v(dwo[3])}, {sr(SWO,4)}, {s(s_kw)} offen offset:3072 lds
            s_mov_b64 exec, -1
            s_add_u32 m0, {s(s_m0x)}, s55
            s_mul_i32 {s(s_kx)}, {s(s_t0)}, {4*O_HS}
            s_add_u32 {s(s_kx)}, {s(s_kx)}, {s(s_ox)}""")
            for j in range(3): g(f"buffer_load_dwordx4 {v(dxo)}, {sr(SWS,4)}, {s(s_kx)} offen offset:{1024*j}{sfx} lds")
        final_loop.dma = dma_wx_dyn
        lfx, lfw, lfw2, lfxn, lfwn, lfw2n = 120, 121, 122, 123, 124, 125
        LACC = 92
        final_addr(lfx, lfw, lfw2, s_lw)
        for i in range(4*len(lsplit)): g(f"v_mov_b32 {v(LACC+i)}, 0")
        g("s_mov_b32 s55, 0")
        if wait_o: wait_o(s_mb, loader=True)
        for c in range(3): dma_x(c)
        g("s_waitcnt vmcnt(6)\ns_barrier")
        final_loop("b", lsplit, 56, LACC, lfx, lfw, lfw2, lfxn, lfwn, lfw2n, True)
        g(f"""s_lshl_b32 {s(s_t0)}, {s(s_lw)}, 11
        v_lshlrev_b32 {v(t0)}, 4, {v(v_lane)}
        v_add_u32 {v(t0)}, {s(s_t0)}, {v(t0)}
        s_nop 7""")
        for i in range(len(lsplit)): g(f"ds_write_b128 {v(t0)}, {vr(LACC+4*i,4)} offset:{1024*i}")
        g("s_waitcnt lgkmcnt(0)\ns_barrier")
    elif dyn is None:
        if wait_o: wait_o(s_mb, loader=True)
        for c in range(3): dma_x(c)
        g("s_waitcnt vmcnt(6)\ns_barrier")
        for c in range(NCF - 1):
            y = 3 if c == 0 else (7 if c + 2 <= NCF - 1 else 0)
            g(f"s_waitcnt vmcnt({y})\ns_barrier")
            if c + 3 <= NCF - 1:
                dma_w(c + 3); dma_x(c + 3)
        g("s_barrier")
    else:
        def dma_dyn(k):
            slot = k % NSF
            g(f"""ds_read_b32 v21, v22 offset:{4*k}
            s_waitcnt lgkmcnt(0)
            v_readfirstlane_b32 {s(s_t0)}, v21
            s_add_u32 m0, {s(s_m0w)}, {slot*SLF}
            s_nop 1
            s_mul_i32 {s(s_kw)}, {s(s_t0)}, {20*1280}""")
            for j in range(3): g(f"buffer_load_dwordx4 {v(dwo[j])}, {sr(SWO,4)}, {s(s_kw)} offen offset:{1024*j} lds")
            g(f"""s_mov_b64 exec, 0xff
            buffer_load_dwordx4 {v(dwo[3])}, {sr(SWO,4)}, {s(s_kw)} offen offset:3072 lds
            s_mov_b64 exec, -1
            s_add_u32 m0, {s(s_m0x)}, {slot*SLF}
            s_mul_i32 {s(s_kx)}, {s(s_t0)}, {O_HS}
            s_add_u32 {s(s_kx)}, {s(s_kx)}, {s(s_ox)}""")
            for j in range(3): g(f"buffer_load_dwordx4 {v(dxo)}, {sr(SWS,4)}, {s(s_kx)} offen offset:{1024*j}{sfx} lds")
        g(f"v_mov_b32 v22, {ORD}\ns_waitcnt vmcnt(0)\ns_barrier")
        for k in range(3): dma_dyn(k)
        g("s_waitcnt vmcnt(14)\ns_barrier")
        for c in range(NCF - 1):
            y = 7 if c + 2 <= NCF - 1 else 0
            g(f"s_waitcnt vmcnt({y})\ns_barrier")
            if c + 3 <= NCF - 1: dma_dyn(c + 3)
        g("s_barrier")
    g(f"s_branch {L('f2done')}")
    g.label(L('f2c'))
    ax = [6, 7]; axh = [8, 9]; aw, awh = 10, 11
    v_g = 12; v_off = 13; v_b2 = 14
    FR = 24
    ACCB, ACCA = 72, 92
    PK = 112
    fx, fw, fw2 = 120, 121, 122
    if early:
        g(f"""v_mov_b32 {v(ax[0])}, {v(E_AX)}
        v_add_u32 {v(axh[0])}, {2*SLOT}, {v(E_AX)}
        v_mov_b32 {v(aw)}, {v(E_AW)}
        v_add_u32 {v(awh)}, {2*SLOT}, {v(E_AW)}
        v_add_u32 {v(fw)}, 4096, {v(E_AW)}
        v_mov_b32 {v(fx)}, {v(E_FX)}
        v_mov_b32 {v(fw2)}, {v(E_FW2)}
        v_mov_b32 {v(v_off)}, {v(E_OFF)}
        v_mov_b32 {v(v_g)}, {v(E_G)}""")
        for t in range(5): g(f"buffer_load_dwordx2 {vr(v_b2+2*t,2)}, {v(E_B2)}, {sr(SB2,4)}, 0 offen offset:{t*32}")
    else:
        g(f"""s_lshl_b32 {s(s_t0)}, {s(s_mb)}, 6
        s_lshl_b32 {s(s_t1)}, {s(s_w)}, 4
        s_add_u32 {s(s_t0)}, {s(s_t0)}, {s(s_t1)}
        v_and_b32 {v(t0)}, 15, {v(v_lane)}
        v_add_u32 {v(t0)}, {s(s_t0)}, {v(t0)}                  ; token
        v_mul_u32_u24 {v(v_off)}, 1280, {v(t0)}
        v_lshlrev_b32 {v(v_g)}, 2, {v(t0)}
        v_lshrrev_b32 {v(t1)}, 4, {v(v_lane)}                  ; q
        v_lshlrev_b32 {v(t2)}, 3, {v(t1)}
        s_mul_i32 {s(s_t0)}, {s(s_ct)}, 160
        v_add_u32 {v(t2)}, {s(s_t0)}, {v(t2)}
        v_add_u32 {v(v_off)}, {v(v_off)}, {v(t2)}""")
        for t in range(5): g(f"buffer_load_dwordx2 {vr(v_b2+2*t,2)}, {v(t2)}, {sr(SB2,4)}, 0 offen offset:{t*32}")
        g(f"""v_and_b32 {v(t0)}, 15, {v(v_lane)}
        v_lshrrev_b32 {v(t2)}, 2, {v(t0)}
        v_sub_u32 {v(t2)}, 0, {v(t2)}
        v_and_b32 {v(t2)}, 3, {v(t2)}
        v_xor_b32 {v(t2)}, {v(t2)}, {v(t1)}
        v_lshlrev_b32 {v(t2)}, 4, {v(t2)}
        v_lshl_add_u32 {v(t2)}, {v(t0)}, 6, {v(t2)}
        s_lshl_b32 {s(s_t0)}, {s(s_w)}, 10
        v_add_u32 {v(ax[0])}, {s(s_t0)}, {v(t2)}
        v_add_u32 {v(axh[0])}, {2*SLOT}, {v(ax[0])}
        v_lshrrev_b32 {v(t2)}, 1, {v(t1)}
        v_lshlrev_b32 {v(t2)}, 4, {v(t2)}
        v_and_b32 {v(t3)}, 1, {v(t1)}
        v_lshl_add_u32 {v(t2)}, {v(t3)}, 2, {v(t2)}
        v_bfe_u32 {v(t3)}, {v(v_lane)}, 2, 2
        v_add_u32 {v(t2)}, {v(t2)}, {v(t3)}                    ; row
        v_mul_u32_u24 {v(t2)}, 160, {v(t2)}
        v_and_b32 {v(t3)}, 3, {v(v_lane)}
        v_lshl_add_u32 {v(t2)}, {v(t3)}, 3, {v(t2)}
        v_add_u32 {v(aw)}, 8192, {v(t2)}
        v_add_u32 {v(awh)}, {2*SLOT}, {v(aw)}
        v_add_u32 {v(fw)}, 12288, {v(t2)}
        v_mul_u32_u24 {v(fx)}, 3072, {v(t1)}
        v_mul_u32_u24 {v(t0)}, 48, {v(t0)}
        v_add_u32 {v(fx)}, {v(fx)}, {v(t0)}
        s_mul_i32 {s(s_t0)}, {s(s_w)}, {16*48}
        v_add_u32 {v(fx)}, {s(s_t0)}, {v(fx)}
        v_bfe_u32 {v(t0)}, {v(v_lane)}, 2, 2
        v_lshl_add_u32 {v(t0)}, {v(t1)}, 2, {v(t0)}
        v_add_u32 {v(t0)}, 64, {v(t0)}
        v_mul_u32_u24 {v(t0)}, 160, {v(t0)}
        v_lshl_add_u32 {v(t0)}, {v(t3)}, 3, {v(t0)}
        v_add_u32 {v(fw2)}, 12288, {v(t0)}""")
    if wait_h: wait_h(s_mb, loader=False)
    g(f"s_mov_b32 {s(s_t0)}, {WS_G2}\nbuffer_load_dword {v(v_g)}, {v(v_g)}, {sr(SWS,4)}, {s(s_t0)} offen{sfx}")
    def reads(c, st, buf):
        slot = c % NS; hi = slot >= 2; so = (slot % 2) * SLOT
        b = FR + 24*buf
        g(f"ds_read_b128 {vr(b,4)}, {v(axh[0] if hi else ax[0])} offset:{so + st*4096}")
        a = awh if hi else aw
        for t in range(5):
            base = so + st*32*160 + t*32
            g(f"ds_read_b64_tr_b16 {vr(b+4+4*t,2)}, {v(a)} offset:{base}\nds_read_b64_tr_b16 {vr(b+6+4*t,2)}, {v(a)} offset:{base+1280}")
    def mf(acc, buf, first):
        b = FR + 24*buf
        for t in range(5):
            g(f"v_mfma_f32_16x16x32_bf16 {vr(acc+4*t,4)}, {vr(b+4+4*t,4)}, {vr(b,4)}, {'0' if first else vr(acc+4*t,4)}")
    for i in range(40): g(f"v_mov_b32 {v(ACCB+i)}, 0")
    g("s_mov_b32 s52, 6")
    g("s_barrier")
    if loop_prio is not None: g(f"s_setprio {loop_prio}")
    if stamps: stamps(1)
    reads(0, 0, 0)
    buf = 0
    g.label(L('f2cl'))
    for c in range(4):
        for st in range(2):
            if st == 1: g("s_barrier")
            nc, ns_ = (c, 1) if st == 0 else (c + 1, 0)
            reads(nc, ns_, buf ^ 1)
            g("s_waitcnt lgkmcnt(11)")
            mf(ACCB, buf, False)
            buf ^= 1
    g(f"s_sub_u32 s52, s52, 1\ns_cmp_lg_u32 s52, 0\ns_cbranch_scc1 {L('f2cl')}")
    g("s_waitcnt lgkmcnt(0)")
    if loop_prio is not None: g("s_setprio 3")
    if stamps: stamps(2)
    g("s_barrier")
    g(f"s_waitcnt vmcnt(0)\nv_sub_f32 {v(t3)}, 1.0, {v(v_g)}\ns_nop 7")
    for t in range(5):
        for q in range(4):
            src = v_b2 + 2*t + q // 2
            if q % 2 == 0: g(f"v_lshlrev_b32 {v(t2)}, 16, {v(src)}")
            else: g(f"v_and_b32 {v(t2)}, 0xffff0000, {v(src)}")
            rb = ACCB + 4*t + q
            g(f"v_add_f32 {v(rb)}, {v(rb)}, {v(t2)}\nv_mul_f32 {v(rb)}, {v(rb)}, {v(t3)}")
    if dyn is None:
        if wait_o: wait_o(s_mb, loader=False)
    else:
        g(f"s_cmp_lg_u32 {s(s_w)}, 0\ns_cbranch_scc1 {L('np0')}")
        dyn["init"](s_mb, NSF * SLF)
        for k in range(3):
            dyn["issue"](); dyn["finish"](f"i{k}")
        g("s_waitcnt lgkmcnt(0)")
        g.label(L('np0'))
        g("s_barrier")
        dyn["after"]()
    if lsplit:
        ctiles = [t for t in range(5) if t not in lsplit]
        g("s_barrier")
        if stamps: stamps(3)
        final_loop("a", ctiles, FR, ACCA, fx, fw, fw2, 123, 124, 125, False)
        if stamps: stamps(5)
        g(f"""s_lshl_b32 {s(s_t0)}, {s(s_w)}, 11
        v_lshlrev_b32 {v(t0)}, 4, {v(v_lane)}
        v_add_u32 {v(t0)}, {s(s_t0)}, {v(t0)}
        s_barrier""")
        for i, t in enumerate(lsplit): g(f"ds_read_b128 {vr(ACCA+4*t,4)}, {v(t0)} offset:{1024*i}")
        for t in range(5):
            if t == lsplit[0]: g("s_waitcnt lgkmcnt(0)")
            for q in range(4):
                g(f"v_fma_f32 {v(ACCB+4*t+q)}, {v(ACCA+4*t+q)}, {v(v_g)}, {v(ACCB+4*t+q)}")
            p = PK + 2*(t % 4)
            g(f"""v_cvt_pk_bf16_f32 {v(p)}, {v(ACCB+4*t)}, {v(ACCB+4*t+1)}
            v_cvt_pk_bf16_f32 {v(p+1)}, {v(ACCB+4*t+2)}, {v(ACCB+4*t+3)}
            buffer_store_dwordx2 {vr(p,2)}, {v(v_off)}, {sr(SOUT,4)}, 0 offen offset:{t*32}""")
    else:
        fxn, fwn, fw2n = 123, 124, 125
        def readsF(j, buf, nxt=False):
            b = FR + 24*buf
            ax_, aw_, aw2_ = (fxn, fwn, fw2n) if nxt else (fx, fw, fw2)
            g(f"ds_read_b128 {vr(b,4)}, {v(ax_)} offset:{j*16}")
            for t in range(5):
                if j < 2:
                    base = j*32*160 + t*32
                    g(f"ds_read_b64_tr_b16 {vr(b+4+4*t,2)}, {v(aw_)} offset:{base}\nds_read_b64_tr_b16 {vr(b+6+4*t,2)}, {v(aw_)} offset:{base+1280}")
                else:
                    base = t*32
                    g(f"ds_read_b64_tr_b16 {vr(b+4+4*t,2)}, {v(aw2_)} offset:{base}")
        g("s_barrier")
        if stamps: stamps(3)
        g(f"s_mov_b32 s52, 4\ns_mov_b32 s53, 0")
        readsF(0, 0)
        buf = 0
        g.label(L('f3cl'))
        for half in range(2):
            g(f"""s_add_u32 s53, s53, {SLF}
            s_cmp_ge_u32 s53, {NSF*SLF}
            s_cselect_b32 s53, 0, s53
            s_mov_b32 s54, {SLF}
            s_cmov_b32 s54, {-(NSF-1)*SLF}
            v_add_u32 {v(fxn)}, s54, {v(fx)}
            v_add_u32 {v(fwn)}, s54, {v(fw)}
            v_add_u32 {v(fw2n)}, s54, {v(fw2)}""")
            for j in range(3):
                if dyn is not None and j == 0:
                    g(f"s_cmp_lg_u32 {s(s_w)}, 0\ns_cbranch_scc1 {L('ni' + str(half))}\ns_cmp_ge_u32 s89, 8\ns_cbranch_scc1 {L('ni' + str(half))}")
                    dyn["issue"]()
                    g.label(L('ni' + str(half)))
                if dyn is not None and j == 2:
                    g(f"s_cmp_lg_u32 {s(s_w)}, 0\ns_cbranch_scc1 {L('nf' + str(half))}\ns_cmp_ge_u32 s89, 8\ns_cbranch_scc1 {L('nf' + str(half))}")
                    dyn["finish"](f"l{half}")
                    g.label(L('nf' + str(half)))
                if j == 2: g("s_waitcnt lgkmcnt(0)\ns_barrier")
                if j < 2: readsF(j + 1, buf ^ 1)
                else: readsF(0, buf ^ 1, nxt=True)
                g(f"s_waitcnt lgkmcnt({6 if j == 1 else 11})")
                mf(ACCA, buf, False)
                buf ^= 1
            g(f"v_mov_b32 {v(fx)}, {v(fxn)}\nv_mov_b32 {v(fw)}, {v(fwn)}\nv_mov_b32 {v(fw2)}, {v(fw2n)}")
        g(f"s_sub_u32 s52, s52, 1\ns_cmp_lg_u32 s52, 0\ns_cbranch_scc1 {L('f3cl')}")
        g("s_waitcnt lgkmcnt(0)")
        if stamps: stamps(5)
        g("s_nop 7")
        for t in range(5):
            for q in range(4):
                g(f"v_fma_f32 {v(ACCB+4*t+q)}, {v(ACCA+4*t+q)}, {v(v_g)}, {v(ACCB+4*t+q)}")
            p = PK + 2*(t % 4)
            g(f"""v_cvt_pk_bf16_f32 {v(p)}, {v(ACCB+4*t)}, {v(ACCB+4*t+1)}
            v_cvt_pk_bf16_f32 {v(p+1)}, {v(ACCB+4*t+2)}, {v(ACCB+4*t+3)}
            buffer_store_dwordx2 {vr(p,2)}, {v(v_off)}, {sr(SOUT,4)}, 0 offen offset:{t*32}""")
    g.label(L('f2done'))
    return dict(lds=max(NS*SLOT, NSF*SLF) + (64 if dyn is not None else 0))

def gen_fin3(g, name="fin_kernel", stamps=False, **kw):
    L = lambda x: f"{name}_{x}"
    g.kernel_start(name)
    P = dict(SW2=4, SWO=8, SWS=12, SOUT=20, SB2=24, s_id=2, s_w=18)
    st = None
    if stamps:
        def st(k):
            if k == 5: return
            g(f"s_memtime s[{60+2*k}:{61+2*k}]\ns_waitcnt lgkmcnt(0)" if k in (2,3,4) else f"s_memtime s[{60+2*k}:{61+2*k}]")
        st(0)
    g(f"s_cmp_ge_u32 s2, 256\ns_cbranch_scc1 {L('exit')}")
    for r, k in ((4, "w2"), (8, "wo"), (12, "ws"), (20, "out"), (24, "b2")): g.srd(r, k)
    g(f"""v_lshrrev_b32 v2, 6, v0
    v_and_b32 v1, 63, v0
    v_readfirstlane_b32 s18, v2
    s_waitcnt lgkmcnt(0)""")
    for r, k in ((4, "w2"), (8, "wo"), (12, "ws"), (20, "out"), (24, "b2")): g.srd_fin(r, k)
    info = gen_fin_role(g, L, P, stamps=st, **kw)
    if stamps:
        g("s_waitcnt vmcnt(0)"); st(4)
        g(f"""s_mov_b64 exec, 1
        s_lshl_b32 s38, s2, 3
        s_add_u32 s38, s38, s18
        s_lshl_b32 s38, s38, 5
        s_add_u32 s38, s38, {WS_STAMP}
        v_mov_b32 v1, 0""")
        for k in range(5): g(f"v_mov_b32 v{8+k}, s{60+2*k}")
        g("buffer_store_dwordx4 v[8:11], v1, s[12:15], s38 offen\nbuffer_store_dwordx4 v[12:15], v1, s[12:15], s38 offen offset:16")
    g.label(L('exit'))
    g("s_endpgm")
    g.kernel_end(name, 128)
    return info
```

```python
from common2 import *

def gen_qkv_role(g, L, P, sc1=False, stagger=(4,5), stamps=None, early=None, trace=False, loads_done=None, ready=None, pretouch=False):
    NCH, NS = 20, 4
    SLOT = 8192 + 10240
    SX, SW, SWS = P["SX"], P["SWQKV"], P["SWS"]
    s_id, s_w = P["s_id"], P["s_w"]
    s_mt, s_nt, s_t0, s_t1, s_m0x, s_m0w, s_kx, s_kw, s_kc, s_lw = 40, 41, 42, 43, 44, 45, 46, 47, 48, 49
    s_scale, s_base = 50, 51
    v_lane = 1
    t0, t1, t2, t3 = 2, 3, 4, 5
    sfx = " sc1" if sc1 else ""
    g(f"""s_and_b32 {s(s_t0)}, {s(s_id)}, 7
    s_lshr_b32 {s(s_t1)}, {s(s_id)}, 3
    s_lshr_b32 {s(s_mt)}, {s(s_t0)}, 1
    s_lshl_b32 {s(s_mt)}, {s(s_mt)}, 2
    s_and_b32 {s(s_nt)}, {s(s_t1)}, 3
    s_add_u32 {s(s_mt)}, {s(s_mt)}, {s(s_nt)}
    s_and_b32 {s(s_nt)}, {s(s_t0)}, 1
    s_mul_i32 {s(s_nt)}, {s(s_nt)}, 6
    s_lshr_b32 {s(s_t1)}, {s(s_t1)}, 2
    s_add_u32 {s(s_nt)}, {s(s_nt)}, {s(s_t1)}
    s_cmp_lt_u32 {s(s_w)}, 4
    s_cbranch_scc1 {L('qc')}""")
    dx = [6, 7]; dw = [8, 9, 10]
    g(f"""s_sub_u32 {s(s_lw)}, {s(s_w)}, 4
    v_lshrrev_b32 {v(t0)}, 2, {v(v_lane)}
    v_lshrrev_b32 {v(t1)}, 4, {v(v_lane)}                ; (row>>2)&3
    v_sub_u32 {v(t1)}, 0, {v(t1)}
    v_and_b32 {v(t1)}, 3, {v(t1)}                        ; g = (-x)&3
    v_and_b32 {v(t2)}, 3, {v(v_lane)}
    v_xor_b32 {v(t2)}, {v(t2)}, {v(t1)}
    s_lshl_b32 {s(s_t0)}, {s(s_mt)}, 7
    s_lshl_b32 {s(s_t1)}, {s(s_lw)}, 5
    s_add_u32 {s(s_t0)}, {s(s_t0)}, {s(s_t1)}
    v_add_u32 {v(t0)}, {s(s_t0)}, {v(t0)}
    v_mul_u32_u24 {v(t0)}, 1280, {v(t0)}
    v_lshl_add_u32 {v(dx[0])}, {v(t2)}, 4, {v(t0)}
    v_add_u32 {v(dx[1])}, {16*1280-1024}, {v(dx[0])}
    s_mul_i32 {s(s_t0)}, {s(s_lw)}, 160""")
    for j in range(3):
        g(f"""v_add_u32 {v(t0)}, {s(s_t0)}, {v(v_lane)}
        v_add_u32 {v(t0)}, {64*j}, {v(t0)}                ; P
        v_mul_u32_u24 {v(t1)}, 3277, {v(t0)}
        v_lshrrev_b32 {v(t1)}, 16, {v(t1)}                ; row = P/20
        v_mul_u32_u24 {v(t2)}, 20, {v(t1)}
        v_sub_u32 {v(t2)}, {v(t0)}, {v(t2)}
        v_mul_u32_u24 {v(t1)}, 3840, {v(t1)}
        v_lshl_add_u32 {v(dw[j])}, {v(t2)}, 4, {v(t1)}
        s_mul_i32 {s(s_t1)}, {s(s_nt)}, 320
        s_sub_u32 {s(s_t1)}, {s(s_t1)}, {1024*j}
        v_add_u32 {v(dw[j])}, {s(s_t1)}, {v(dw[j])}""")
    gq = g
    g(f"""s_lshl_b32 {s(s_m0x)}, {s(s_lw)}, 11
    s_mul_i32 {s(s_m0w)}, {s(s_lw)}, 2560
    s_add_u32 {s(s_m0w)}, {s(s_m0w)}, 8192""")
    if stagger == "x":
        g(f"""s_add_u32 {s(s_kc)}, {s(s_mt)}, {s(s_nt)}
        s_and_b32 {s(s_kc)}, {s(s_kc)}, 3
        s_mul_i32 {s(s_kc)}, {s(s_kc)}, 5
        s_bfe_u32 {s(s_t0)}, {s(s_id)}, 0x20001
        s_add_u32 {s(s_kc)}, {s(s_kc)}, {s(s_t0)}
        s_and_b32 {s(s_t0)}, {s(s_id)}, 1
        s_add_u32 {s(s_kc)}, {s(s_kc)}, {s(s_t0)}""")
    else:
        d, step = stagger
        m = (65536 + d - 1) // d
        g(f"""s_add_u32 {s(s_kc)}, {s(s_mt)}, {s(s_nt)}
        s_mul_i32 {s(s_t0)}, {s(s_kc)}, {m}
        s_lshr_b32 {s(s_t0)}, {s(s_t0)}, 16
        s_mul_i32 {s(s_t0)}, {s(s_t0)}, {d}
        s_sub_u32 {s(s_kc)}, {s(s_kc)}, {s(s_t0)}
        s_mul_i32 {s(s_kc)}, {s(s_kc)}, {step}""")
    def dma(c):
        slot = c % NS
        gq(f"""s_add_u32 m0, {s(s_m0x)}, {slot*SLOT}
        s_lshl_b32 {s(s_kx)}, {s(s_kc)}, 6
        s_mul_i32 {s(s_kw)}, {s(s_kc)}, {32*3840}
        buffer_load_dwordx4 {v(dx[0])}, {sr(SX,4)}, {s(s_kx)} offen lds
        buffer_load_dwordx4 {v(dx[1])}, {sr(SX,4)}, {s(s_kx)} offen offset:1024 lds
        s_add_u32 m0, {s(s_m0w)}, {slot*SLOT}
        s_add_u32 {s(s_kc)}, {s(s_kc)}, 1
        buffer_load_dwordx4 {v(dw[0])}, {sr(SW,4)}, {s(s_kw)} offen lds
        buffer_load_dwordx4 {v(dw[1])}, {sr(SW,4)}, {s(s_kw)} offen offset:1024 lds
        s_mov_b32 exec_hi, 0
        buffer_load_dwordx4 {v(dw[2])}, {sr(SW,4)}, {s(s_kw)} offen offset:2048 lds
        s_mov_b32 exec_hi, -1
        s_cmp_eq_u32 {s(s_kc)}, {NCH}
        s_cselect_b32 {s(s_kc)}, 0, {s(s_kc)}""")
    s_it = 52
    def tr():
        if trace: g("s_memtime s[54:55]\ns_waitcnt lgkmcnt(0)\nv_cmp_eq_u32 vcc, s53, v1\nv_mov_b32 v22, s54\ns_add_u32 s53, s53, 1\nv_cndmask_b32 v20, v20, v22, vcc")
    if trace: g("s_mov_b32 s53, 0\nv_mov_b32 v20, 0")
    tr()
    g0 = g
    class _T:
        def __call__(self, line=""):
            for l in line.split("\n"):
                g0(l)
                if l.strip() == "s_barrier": tr()
        def label(self, n): g0.label(n)
    if trace: g = _T()
    if ready: ready()
    dma(0); dma(1)
    g("s_waitcnt vmcnt(5)\ns_barrier")
    dma(2)
    g(f"s_mov_b32 {s(s_it)}, 4")
    g.label(L('qll'))
    for c in range(4):
        g("s_waitcnt vmcnt(5)\ns_barrier")
        dma(c + 3)
    g(f"s_sub_u32 {s(s_it)}, {s(s_it)}, 1\ns_cmp_lg_u32 {s(s_it)}, 0\ns_cbranch_scc1 {L('qll')}")
    g("s_waitcnt vmcnt(5)\ns_barrier")
    dma(19)
    g("s_waitcnt vmcnt(5)\ns_barrier")
    g("s_waitcnt vmcnt(0)\ns_barrier")
    g("s_barrier")
    if loads_done: loads_done(s_lw, s_mt, s_nt)
    g = g0
    if trace:
        g(f"""s_lshl_b32 s54, {s(s_id)}, 2
        s_add_u32 s54, s54, {s(s_lw)}
        s_lshl_b32 s54, s54, 8
        s_add_u32 s54, s54, {WS_STAMP + 0x100000}
        v_lshlrev_b32 v21, 2, v1
        buffer_store_dword v20, v21, {sr(SWS,4)}, s54 offen""")
    g(f"s_branch {L('qdone')}")
    g.label(L('qc'))
    ax = [6, 7]; axh = [8, 9]; aw, awh, awr, awrh = 10, 11, 12, 13
    XF = 14
    WF = 22
    ACC = 42
    vo, vo2 = 122, 123
    g(f"""v_and_b32 {v(t0)}, 31, {v(v_lane)}
    v_lshrrev_b32 {v(t1)}, 5, {v(v_lane)}                 ; h
    v_lshrrev_b32 {v(t2)}, 2, {v(t0)}
    v_sub_u32 {v(t2)}, 0, {v(t2)}
    v_and_b32 {v(t2)}, 3, {v(t2)}                         ; g
    v_xor_b32 {v(t2)}, {v(t2)}, {v(t1)}
    v_lshlrev_b32 {v(t2)}, 4, {v(t2)}
    v_lshl_add_u32 {v(t0)}, {v(t0)}, 6, {v(t2)}
    s_lshl_b32 {s(s_t0)}, {s(s_w)}, 11
    v_add_u32 {v(ax[0])}, {s(s_t0)}, {v(t0)}
    v_xor_b32 {v(ax[1])}, 32, {v(ax[0])}
    v_add_u32 {v(axh[0])}, {2*SLOT}, {v(ax[0])}
    v_add_u32 {v(axh[1])}, {2*SLOT}, {v(ax[1])}""")
    g(f"""v_lshrrev_b32 {v(t0)}, 5, {v(v_lane)}            ; khalf
    v_bfe_u32 {v(t2)}, {v(v_lane)}, 2, 2                  ; r4
    v_lshl_add_u32 {v(t0)}, {v(t0)}, 3, {v(t2)}
    v_mul_u32_u24 {v(t0)}, 320, {v(t0)}
    v_add_u32 {v(t0)}, 8192, {v(t0)}
    v_bfe_u32 {v(t1)}, {v(v_lane)}, 4, 1                  ; G
    v_and_b32 {v(t3)}, 3, {v(v_lane)}                     ; c
    s_cmp_ge_u32 {s(s_nt)}, 8
    s_cbranch_scc1 {L('qv')}""")
    g(f"""v_mul_u32_u24 {v(aw)}, 160, {v(t1)}
    v_and_b32 {v(t2)}, 1, {v(t3)}
    v_lshl_add_u32 {v(aw)}, {v(t2)}, 4, {v(aw)}
    v_lshrrev_b32 {v(t2)}, 1, {v(t3)}
    v_lshl_add_u32 {v(aw)}, {v(t2)}, 3, {v(aw)}
    v_add_u32 {v(aw)}, {v(aw)}, {v(t0)}
    v_lshl_add_u32 {v(t2)}, {v(t1)}, 2, {v(t3)}
    v_mul_u32_u24 {v(awr)}, 40, {v(t2)}
    v_add_u32 {v(awr)}, 32, {v(awr)}
    v_add_u32 {v(awr)}, {v(awr)}, {v(t0)}
    v_add_u32 {v(awh)}, {2*SLOT}, {v(aw)}
    v_add_u32 {v(awrh)}, {2*SLOT}, {v(awr)}""")
    def reads_x(c, st):
        slot = c % NS; so = (slot % 2) * SLOT
        a = (axh if slot >= 2 else ax)[st]
        g(f"ds_read_b128 {vr(XF + 4*st, 4)}, {v(a)} offset:{so}")
    def reads_w(c, st, t, vtype):
        slot = c % NS; so = (slot % 2) * SLOT
        if vtype: a, off = (awh if slot >= 2 else aw), 64*t
        elif t < 4: a, off = (awh if slot >= 2 else aw), 40*t
        else: a, off = (awrh if slot >= 2 else awr), 0
        base = so + st*16*320 + off
        g(f"ds_read_b64_tr_b16 {vr(WF+4*t,2)}, {v(a)} offset:{base}\nds_read_b64_tr_b16 {vr(WF+4*t+2,2)}, {v(a)} offset:{base+4*320}")
    def mainloop(vtype):
        tag = 'v' if vtype else 'k'
        for i in range(80): g(f"v_mov_b32 {v(ACC+i)}, 0")
        g(f"s_mov_b32 s52, 5")
        if ready: ready()
        if pretouch:
            g(f"buffer_load_dword v127, {v(vo)}, {sr(SWS,4)}, {s(s_base)} offen")
        if early: early()
        g("s_barrier")
        if stamps: stamps(1)
        reads_x(0, 0)
        for t in range(5): reads_w(0, 0, t, vtype)
        g.label(L('qcl' + tag))
        for c in range(4):
            for st in range(2):
                if st == 1: g("s_barrier")
                nc, ns_ = (c, 1) if st == 0 else (c + 1, 0)
                reads_x(nc, ns_)
                for t in range(5):
                    g("s_waitcnt lgkmcnt(9)")
                    X, W = vr(XF + 4*st, 4), vr(WF + 4*t, 4)
                    A, B = (X, W) if vtype else (W, X)
                    a = ACC + 16*t
                    g(f"v_mfma_f32_32x32x16_bf16 {vr(a,16)}, {A}, {B}, {vr(a,16)}")
                    reads_w(nc, ns_, t, vtype)
        g(f"s_sub_u32 s52, s52, 1\ns_cmp_lg_u32 s52, 0\ns_cbranch_scc1 {L('qcl' + tag)}")
        g("s_waitcnt lgkmcnt(0)\ns_nop 15\ns_nop 3")
        if stamps: stamps(2)
    g(f"""s_lshl_b32 {s(s_t0)}, {s(s_mt)}, 2
    s_add_u32 {s(s_t0)}, {s(s_t0)}, {s(s_w)}
    s_mul_i32 {s(s_base)}, {s(s_t0)}, {TSG}
    s_add_u32 {s(s_base)}, {s(s_base)}, {WS_T}
    s_mul_i32 {s(s_t0)}, {s(s_nt)}, {8*1280}
    s_add_u32 {s(s_base)}, {s(s_base)}, {s(s_t0)}
    s_cmp_ge_u32 {s(s_nt)}, 4
    s_mov_b32 {s(s_scale)}, {f32hex(QSCALE)}
    s_cmov_b32 {s(s_scale)}, 1.0
    v_lshlrev_b32 {v(vo)}, 4, {v(v_lane)}
    v_and_b32 {v(t0)}, 31, {v(v_lane)}
    v_lshlrev_b32 {v(vo2)}, 3, {v(t0)}
    v_lshrrev_b32 {v(t1)}, 5, {v(v_lane)}
    v_mul_u32_u24 {v(t1)}, 1280, {v(t1)}
    v_add_u32 {v(vo2)}, {v(vo2)}, {v(t1)}
    v_add_u32 {v(vo2)}, 1024, {v(vo2)}""")
    mainloop(False)
    PK = XF
    k = 0
    for t in range(4):
        for G in range(2):
            a = ACC + 16*t + 8*G
            p = PK + 4*(k % 6); k += 1
            for q in range(8): g(f"v_mul_f32 {v(a+q)}, {s(s_scale)}, {v(a+q)}")
            for q in range(4): g(f"v_cvt_pk_bf16_f32 {v(p+q)}, {v(a+2*q)}, {v(a+2*q+1)}")
            head = t + 4*G
            g(f"s_add_u32 {s(s_t0)}, {s(s_base)}, {head*1280}")
            g(f"buffer_store_dwordx4 {vr(p,4)}, {v(vo)}, {sr(SWS,4)}, {s(s_t0)} offen{sfx}")
    for i in range(4):
        a = ACC + 64 + 4*i
        p = PK + 24 + 2*(i % 2)
        for q in range(4): g(f"v_mul_f32 {v(a+q)}, {s(s_scale)}, {v(a+q)}")
        g(f"""v_cvt_pk_bf16_f32 {v(p)}, {v(a)}, {v(a+1)}
        v_cvt_pk_bf16_f32 {v(p+1)}, {v(a+2)}, {v(a+3)}
        s_add_u32 {s(s_t0)}, {s(s_base)}, {2*i*1280}
        buffer_store_dwordx2 {vr(p,2)}, {v(vo2)}, {sr(SWS,4)}, {s(s_t0)} offen{sfx}""")
        if i % 2 == 1: g("s_nop 0")
    g(f"s_branch {L('qdone')}")
    g.label(L('qv'))
    g(f"""v_lshlrev_b32 {v(aw)}, 5, {v(t1)}                 ; G*32
    v_lshl_add_u32 {v(aw)}, {v(t3)}, 3, {v(aw)}            ; + c*8
    v_add_u32 {v(aw)}, {v(aw)}, {v(t0)}
    v_add_u32 {v(awh)}, {2*SLOT}, {v(aw)}
    s_lshl_b32 {s(s_t0)}, {s(s_mt)}, 2
    s_add_u32 {s(s_t0)}, {s(s_t0)}, {s(s_w)}
    s_mul_i32 {s(s_base)}, {s(s_t0)}, {TSG}
    s_sub_u32 {s(s_t0)}, {s(s_nt)}, 8
    s_mul_i32 {s(s_t0)}, {s(s_t0)}, {V_GS}
    s_add_u32 {s(s_base)}, {s(s_base)}, {s(s_t0)}
    s_add_u32 {s(s_base)}, {s(s_base)}, {WS_T + T_V}
    v_and_b32 {v(t0)}, 31, {v(v_lane)}
    v_lshlrev_b32 {v(vo)}, 4, {v(t0)}
    v_lshrrev_b32 {v(t1)}, 5, {v(v_lane)}
    v_mul_u32_u24 {v(t1)}, 2560, {v(t1)}
    v_add_u32 {v(vo)}, {v(vo)}, {v(t1)}                    ; h*2560 + n*16
    v_lshlrev_b32 {v(vo2)}, 4, {v(v_lane)}""")
    mainloop(True)
    k = 0
    for t in range(5):
        for u in range(2):
            a = ACC + 16*t + 8*u
            p = PK + 4*(k % 6); k += 1
            for q in range(4): g(f"v_cvt_pk_bf16_f32 {v(p+q)}, {v(a+2*q)}, {v(a+2*q+1)}")
            g(f"s_add_u32 {s(s_t0)}, {s(s_base)}, {u*5120 + t*512}")
            g(f"buffer_store_dwordx4 {vr(p,4)}, {v(vo)}, {sr(SWS,4)}, {s(s_t0)} offen{sfx}")
    for q in range(4): g(f"v_mov_b32 {v(PK+24+q)}, 0x3f803f80")
    g(f"""s_add_u32 {s(s_t0)}, {s(s_base)}, 10240
    s_mov_b64 exec, 0xff
    buffer_store_dwordx4 {vr(PK+24,4)}, {v(vo2)}, {sr(SWS,4)}, {s(s_t0)} offen{sfx}
    s_mov_b64 exec, -1""")
    g.label(L('qdone'))
    return dict(lds=NS*SLOT, s_mt=s_mt, s_nt=s_nt)

def gen_qkv3(g, name="qkv_kernel", stamps=False, **kw):
    L = lambda x: f"{name}_{x}"
    g.kernel_start(name)
    P = dict(SX=4, SWQKV=8, SWS=12, s_id=2, s_w=18)
    st = None
    if stamps:
        def st(k): g(f"s_memtime s[{60+2*k}:{61+2*k}]")
        st(0)
    g(f"s_cmp_ge_u32 s2, 192\ns_cbranch_scc1 {L('exit')}")
    g.srd(4, "ax"); g.srd(8, "wqkv"); g.srd(12, "ws")
    g(f"""v_lshrrev_b32 v2, 6, v0
    v_and_b32 v1, 63, v0
    v_readfirstlane_b32 s18, v2
    s_waitcnt lgkmcnt(0)""")
    g.srd_fin(4, "ax"); g.srd_fin(8, "wqkv"); g.srd_fin(12, "ws")
    info = gen_qkv_role(g, L, P, stamps=st, **kw)
    if stamps:
        g("s_waitcnt vmcnt(0)"); st(3)
        g(f"""s_waitcnt lgkmcnt(0)
        s_mov_b64 exec, 1
        s_lshl_b32 s38, s2, 3
        s_add_u32 s38, s38, s18
        s_lshl_b32 s38, s38, 4
        s_add_u32 s38, s38, {WS_STAMP}
        v_mov_b32 v1, 0
        v_mov_b32 v8, s60
        v_mov_b32 v9, s62
        v_mov_b32 v10, s64
        v_mov_b32 v11, s66
        buffer_store_dwordx4 v[8:11], v1, s[12:15], s38 offen""")
    g.label(L('exit'))
    g("s_endpgm")
    g.kernel_end(name, 128)
    return info
```

```python
import fused
BEST = dict(two=True, prio_f=0, prio_fl=1, prio_f2=0, prio_att=1, att_kw=dict(dma_old=True, vmask=True, kstag=False, pair=True, n0=6), qkw=dict(warm=False, tlbpf=True, pair=True, st_sfx=' sc1', stagger=(10,1), pretouch=True, idlepf=True), fin_kw=dict(wo_pf=False), f1_kw=dict(setup_first=True), fin_early='loader')
def build(**over):
    kw = {k: (dict(v) if isinstance(v, dict) else v) for k, v in BEST.items()}
    kw.update(over)
    return fused.build(**kw)
if __name__ == "__main__":
    import sys
    t, l = build()
    out = sys.argv[1] if len(sys.argv) > 1 else "gated_mix__mha_block__dense_activation_squared_relu__prompt.s"
    open(out, "w").write(t); print("wrote", out, l)
```

```python
import sys, os
sys.path.insert(0, os.path.dirname(os.path.abspath(__file__)))
from common2 import *
from r_qkv import gen_qkv_role
from r_att import gen_att_role
from r_ffn1 import gen_ffn1_role
from r_fin import gen_fin_role
from r_qkv5 import gen_qkv5_role
REF = "gated_mix__mha_block__dense_activation_squared_relu__prompt.s.ref"
HDR = open(REF).read().split("; Override launch")[0] if os.path.exists(REF) else ""
NAME = "gated_mix__mha_block__dense_activation_squared_relu__prompt_kernel"

def gen_gate2(g, SX, SG, SWS, s_mt, s_nt, s_w, sc1):
    sfx = " sc1" if sc1 else ""
    t1, t7 = 3, 4
    g(f"""s_lshl_b32 s53, {s(s_mt)}, 7
    s_lshl_b32 s54, {s(s_nt)}, 3
    s_add_u32 s53, s53, s54
    s_lshl_b32 s54, {s(s_w)}, 1
    s_add_u32 s53, s53, s54                  ; row
    s_mul_i32 s54, s53, 1280
    s_lshl_b32 s55, s53, 2
    s_add_u32 s55, s55, {WS_G2}
    v_lshlrev_b32 v{t1}, 5, v1""")
    for i in range(24): g(f"v_mov_b32 v{56+i}, 0")
    g(f"""s_mov_b32 exec_hi, 0xff
    buffer_load_dwordx4 v[56:59], v{t1}, {sr(SX,4)}, s54 offen
    buffer_load_dwordx4 v[60:63], v{t1}, {sr(SX,4)}, s54 offen offset:16
    buffer_load_dwordx4 v[64:67], v{t1}, {sr(SX,4)}, s54 offen offset:1280
    buffer_load_dwordx4 v[68:71], v{t1}, {sr(SX,4)}, s54 offen offset:1296
    buffer_load_dwordx4 v[72:75], v{t1}, {sr(SG,4)}, 0 offen
    buffer_load_dwordx4 v[76:79], v{t1}, {sr(SG,4)}, 0 offen offset:16
    s_mov_b32 exec_hi, -1
    s_waitcnt vmcnt(0)
    v_mov_b32 v80, 0
    v_mov_b32 v81, 0""")
    for i in range(8):
        g(f"v_dot2_f32_bf16 v80, v{56+i}, v{72+i}, v80\nv_dot2_f32_bf16 v81, v{64+i}, v{72+i}, v81")
    g("s_nop 3")
    for dpp in ["row_shr:1", "row_shr:2", "row_shr:4", "row_shr:8", "row_bcast:15 row_mask:0xa", "row_bcast:31 row_mask:0xc"]:
        for a in (80, 81):
            g(f"v_add_f32_dpp v{a}, v{a}, v{a} {dpp} bank_mask:0xf" if "row_mask" in dpp else f"v_add_f32_dpp v{a}, v{a}, v{a} {dpp} row_mask:0xf bank_mask:0xf bound_ctrl:0")
        g("s_nop 1")
    for a in (80, 81):
        g(f"v_mul_f32 v{a}, {f32hex(-1.4426950408889634)}, v{a}")
    for a in (80, 81): g(f"v_exp_f32 v{a}, v{a}")
    g("s_nop 0")
    for a in (80, 81): g(f"v_add_f32 v{a}, 1.0, v{a}")
    for a in (80, 81): g(f"v_rcp_f32 v{a}, v{a}")
    g(f"""v_mov_b32 v{t7}, 0
    s_mov_b32 exec_lo, 0
    s_mov_b32 exec_hi, 0x80000000
    buffer_store_dwordx2 v[80:81], v{t7}, {sr(SWS,4)}, s55 offen{sfx}
    s_mov_b64 exec, -1""")

def gen_fused(g, name=NAME, stamps=False, prio_att=0, prio_qkv=3, prio_f=2, prio_fl=1, prio_f2=None, att_split=False, fwait=True, sc1=True, fskip=(), fnone=False, prof=False, trace=False, pretouch=True, stagger=(10,2), att_kw={}, fall=False, nogate_early=False, psleep=4, two=False, fintrace=False, fin_kw={}, fin_early=True, f1_kw={}, dbgdump=False, dyn=False, fskip2=(), l2warm=False, prepoll=False, single5=False, q5_kw={}):
    L = lambda x: f"fk_{x}"
    SX, SWA, SWS, SAUX, SW2, SWO, SB2, SOUT = 4, 8, 12, 20, 24, 28, 32, 36
    s_w, s_id, s_nonce = 18, 19, 60
    SD = 56
    s_p0, s_p1, s_p2 = 61, 62, 63
    vq = [124, 125, 126]
    uid = [0]
    g.kernel_start(name)
    def stamp(k):
        if stamps: g(f"s_memrealtime s[{64+2*k}:{65+2*k}]")
        if stamps and k in (3, 4): g(f"s_memtime s[{80+2*(k-3)}:{81+2*(k-3)}]")
    stamp(0)
    g(f"s_cmp_ge_u32 s2, 512\ns_cbranch_scc1 {L('exit')}")
    g(f"""s_load_dwordx4 s[4:7], s[0:1], 0
    s_load_dwordx4 s[56:59], s[0:1], 80
    v_lshrrev_b32 v2, 6, v0
    v_and_b32 v1, 63, v0
    v_readfirstlane_b32 {s(s_w)}, v2
    s_mov_b32 {s(s_nonce)}, 0
    s_cmp_ge_u32 s2, 256
    s_cbranch_scc1 {L('frole')}""")
    def ready_a():
        g(f"""s_waitcnt lgkmcnt(0)
        s_mov_b32 s8, s6
        s_mov_b32 s9, s7
        s_mov_b32 s6, {SZ['ax']}
        s_mov_b32 s7, 0x20000
        s_mov_b32 s10, {SZ['wqkv']}
        s_mov_b32 s11, 0x20000
        s_mov_b32 s12, s58
        s_mov_b32 s13, s59
        s_mov_b32 s14, {SZ['ws']}
        s_mov_b32 s15, 0x20000""")
    def get_nonce():
        n = uid[0]; uid[0] += 1
        g(f"""s_cmp_lg_u32 {s(s_nonce)}, 0
        s_cbranch_scc1 {L('gn_done')}{n}
        s_mov_b32 {s(s_p0)}, 0
        v_mov_b32 {v(vq[0])}, 0""")
        g.label(f"{L('gn_loop')}{n}")
        g(f"""global_load_dword {v(vq[1])}, {v(vq[0])}, {sr(SD,2)} sc0 sc1
        s_add_u32 {s(s_p0)}, {s(s_p0)}, 1
        s_waitcnt vmcnt(0)
        v_readfirstlane_b32 {s(s_nonce)}, {v(vq[1])}
        s_cmp_gt_u32 {s(s_p0)}, 0x20000
        s_cbranch_scc1 {L('exit')}
        s_cmp_eq_u32 {s(s_nonce)}, 0
        s_cbranch_scc1 {L('gn_loop')}{n}""")
        g.label(f"{L('gn_done')}{n}")
    def poll(nlanes_mask_lo, nlanes_mask_hi):
        n = uid[0]; uid[0] += 1
        g(f"""s_mov_b32 {s(s_p0)}, 0
        s_mov_b32 exec_lo, {nlanes_mask_lo}
        s_mov_b32 exec_hi, {nlanes_mask_hi}""")
        g.label(f"{L('pl')}{n}")
        g(f"""buffer_load_dword {v(vq[1])}, {v(vq[0])}, {sr(SWS,4)}, 0 offen sc0 sc1
        s_add_u32 {s(s_p0)}, {s(s_p0)}, 1
        s_waitcnt vmcnt(0)
        v_cmp_ne_u32 vcc, {s(s_nonce)}, {v(vq[1])}
        s_cmp_gt_u32 {s(s_p0)}, 0x20000
        s_cbranch_scc1 {L('exit_full')}
        s_cbranch_vccz {L('pd')}{n}
        {('s_sleep %d' % psleep) if psleep else 's_nop 0'}
        s_branch {L('pl')}{n}""")
        g.label(f"{L('pd')}{n}")
        g("s_mov_b64 exec, -1")
    def flag_store(s_off):
        g(f"""v_lshlrev_b32 v123, 4, v1
        v_mov_b32 v124, {s(s_nonce)}
        v_mov_b32 v125, {s(s_nonce)}
        v_mov_b32 v126, {s(s_nonce)}
        v_mov_b32 v127, {s(s_nonce)}
        s_mov_b64 exec, 0xff
        buffer_store_dwordx4 v[124:127], v123, {sr(SWS,4)}, {s(s_off)} offen sc0 sc1
        s_mov_b64 exec, -1""")
    def publish(s_off):
        n = uid[0]; uid[0] += 1
        g(f"""s_waitcnt vmcnt(0)
        s_barrier
        s_cmp_lg_u32 {s(s_w)}, 0
        s_cbranch_scc1 {L('pub')}{n}""")
        get_nonce()
        flag_store(s_off)
        g.label(f"{L('pub')}{n}")
    g(f"s_mov_b32 {s(s_id)}, s2")
    def nonce_pub():
        g(f"""s_or_b32 {s(s_p0)}, s2, {s(s_w)}
        s_cmp_lg_u32 {s(s_p0)}, 0
        s_cbranch_scc1 {L('nononce')}
        s_memrealtime s[62:63]
        s_waitcnt lgkmcnt(0)
        s_or_b32 {s(s_nonce)}, s62, 1
        v_mov_b32 {v(vq[0])}, 0
        v_mov_b32 {v(vq[1])}, {s(s_nonce)}
        s_mov_b64 exec, 1
        global_store_dword {v(vq[0])}, {v(vq[1])}, {sr(SD,2)} sc0 sc1
        s_mov_b64 exec, -1""")
        g.label(L('nononce'))
    if prio_qkv: g(f"s_setprio {prio_qkv}")
    if two: pass
    elif single5:
        g(f"""s_and_b32 s42, {s(s_id)}, 7
        s_lshr_b32 s43, {s(s_id)}, 3
        s_lshr_b32 s40, s42, 1
        s_lshl_b32 s40, s40, 2
        s_and_b32 s41, s43, 3
        s_add_u32 s40, s40, s41                 ; mt
        s_and_b32 s41, s42, 1
        s_lshl_b32 s41, s41, 3
        s_lshr_b32 s43, s43, 2
        s_add_u32 s41, s41, s43                 ; nt
        s_cmp_ge_u32 s41, 15
        s_cbranch_scc1 {L('att0')}""")
    else: g(f"s_cmp_ge_u32 {s(s_id)}, 192\ns_cbranch_scc1 {L('att0')}")
    LA = lambda x: f"fk_q_{x}"
    done_np = [0]
    def nonce_pub_once():
        k = done_np[0]; done_np[0] += 1
        g(f"""s_or_b32 {s(s_p0)}, s2, {s(s_w)}
        s_cmp_lg_u32 {s(s_p0)}, 0
        s_cbranch_scc1 {L('nononce')}{k}
        s_memrealtime s[62:63]
        s_waitcnt lgkmcnt(0)
        s_or_b32 {s(s_nonce)}, s62, 1
        v_mov_b32 {v(vq[0])}, 0
        v_mov_b32 {v(vq[1])}, {s(s_nonce)}
        s_mov_b64 exec, 1
        global_store_dword {v(vq[0])}, {v(vq[1])}, {sr(SD,2)} sc0 sc1
        s_mov_b64 exec, -1""")
        g.label(f"{L('nononce')}{k}")
    def q_loads_done(s_lw, s_mt, s_nt):
        n = uid[0]; uid[0] += 1
        g(f"s_cmp_lg_u32 {s(s_lw)}, 0\ns_cbranch_scc1 {L('ld')}{n}")
        get_nonce()
        g(f"""s_lshl_b32 {s(s_p1)}, {s(s_nt)}, 4
        s_add_u32 {s(s_p1)}, {s(s_p1)}, {s(s_mt)}
        s_lshl_b32 {s(s_p1)}, {s(s_p1)}, 7
        s_add_u32 {s(s_p1)}, {s(s_p1)}, {FL_QLD}""")
        flag_store(s_p1)
        g.label(f"{L('ld')}{n}")
    def q_early():
        n = uid[0]; uid[0] += 1
        if not done_np[0]:
            pass
        nonce_pub_once()
        g(f"s_cmp_lg_u32 {s(s_w)}, 0\ns_cbranch_scc1 {L('qe')}{n}")
        get_nonce()
        g.label(f"{L('qe')}{n}")
    if not two:
        if single5:
            gen_qkv5_role(g, LA, dict(SX=SX, SWQKV=SWA, SWS=SWS, s_id=s_id, s_w=s_w, s_mt=40, s_nt=41), sc1=sc1, early=q_early, loads_done=q_loads_done, ready=ready_a, **q5_kw)
            info = dict(s_mt=40, s_nt=41)
        else:
            info = gen_qkv_role(g, LA, dict(SX=SX, SWQKV=SWA, SWS=SWS, s_id=s_id, s_w=s_w), sc1=sc1, early=q_early, loads_done=q_loads_done, ready=ready_a, pretouch=pretouch, stagger=stagger)
        stamp(1)
        g(f"""s_lshl_b32 {s(s_p1)}, {s(info['s_nt'])}, 4
        s_add_u32 {s(s_p1)}, {s(s_p1)}, {s(info['s_mt'])}
        s_lshl_b32 {s(s_p1)}, {s(s_p1)}, 7
        s_add_u32 {s(s_p1)}, {s(s_p1)}, {FL_QKV}""")
        publish(s_p1)
        stamp(2)
    if not two: g(f"s_branch {L('att')}")
    g.label(L('att0'))
    if not two: ready_a()
    g.label(L('att'))
    def att_wait(s_head, s_qb):
        if two:
            stamp(3); return
        n = uid[0]; uid[0] += 1
        g(f"s_cmp_lg_u32 {s(s_w)}, 0\ns_cbranch_scc1 {L('aw')}{n}")
        get_nonce()
        if single5:
            g(f"""s_lshr_b32 s84, {s(s_head)}, 1
            s_mul_i32 s84, s84, 40
            s_add_u32 s85, s84, 39
            s_lshr_b32 s84, s84, 7               ; a0
            s_lshr_b32 s85, s85, 7               ; a1
            s_mul_i32 s86, {s(s_head)}, 20
            s_add_u32 s87, s86, 19
            s_lshr_b32 s86, s86, 7
            s_lshr_b32 s87, s87, 7
            s_add_u32 s86, s86, 10               ; V tile 0
            s_add_u32 s87, s87, 10               ; V tile 1
            s_lshr_b32 s88, {s(s_head)}, 3
            s_add_u32 s88, s88, 10               ; ones
            v_lshrrev_b32 {v(vq[2])}, 4, v1       ; slot
            v_and_b32 {v(vq[1])}, 1, {v(vq[2])}
            v_mov_b32 {v(vq[0])}, s84
            v_mov_b32 v127, s85
            v_cmp_eq_u32 vcc, 1, {v(vq[1])}
            s_nop 1
            v_cndmask_b32 {v(vq[0])}, {v(vq[0])}, v127, vcc
            v_lshrrev_b32 {v(vq[1])}, 1, {v(vq[2])}
            v_mul_u32_u24 {v(vq[1])}, 5, {v(vq[1])}
            v_add_u32 {v(vq[0])}, {v(vq[0])}, {v(vq[1])}
            v_lshlrev_b32 {v(vq[0])}, 4, {v(vq[0])}
            v_and_b32 {v(vq[1])}, 15, v1
            v_add_u32 {v(vq[0])}, {v(vq[1])}, {v(vq[0])}
            v_lshlrev_b32 {v(vq[0])}, 7, {v(vq[0])}
            v_add_u32 {v(vq[0])}, {FL_QKV}, {v(vq[0])}""")
            poll(-1, -1)
            g(f"""v_lshrrev_b32 {v(vq[2])}, 4, v1
            v_mov_b32 {v(vq[0])}, s86
            v_mov_b32 v127, s87
            v_cmp_eq_u32 vcc, 1, {v(vq[2])}
            s_nop 1
            v_cndmask_b32 {v(vq[0])}, {v(vq[0])}, v127, vcc
            v_mov_b32 v127, s88
            v_cmp_eq_u32 vcc, 2, {v(vq[2])}
            s_nop 1
            v_cndmask_b32 {v(vq[0])}, {v(vq[0])}, v127, vcc
            v_lshlrev_b32 {v(vq[0])}, 4, {v(vq[0])}
            v_and_b32 {v(vq[1])}, 15, v1
            v_add_u32 {v(vq[0])}, {v(vq[1])}, {v(vq[0])}
            v_lshlrev_b32 {v(vq[0])}, 7, {v(vq[0])}
            v_add_u32 {v(vq[0])}, {FL_QKV}, {v(vq[0])}""")
            poll(-1, 0xffff)
            g.label(f"{L('aw')}{n}")
            g("s_barrier")
            stamp(3)
            return
        g(f"""s_lshr_b32 {s(s_p1)}, {s(s_head)}, 3
        v_lshrrev_b32 {v(vq[0])}, 4, v1
        v_lshlrev_b32 {v(vq[0])}, 2, {v(vq[0])}
        v_add_u32 {v(vq[0])}, {s(s_p1)}, {v(vq[0])}
        v_lshlrev_b32 {v(vq[0])}, 4, {v(vq[0])}
        v_and_b32 {v(vq[1])}, 15, v1
        v_add_u32 {v(vq[0])}, {v(vq[1])}, {v(vq[0])}
        v_lshlrev_b32 {v(vq[0])}, 7, {v(vq[0])}
        v_add_u32 {v(vq[0])}, {FL_QKV}, {v(vq[0])}""")
        poll(-1, 0xffff)
        g.label(f"{L('aw')}{n}")
        g("s_barrier")
        stamp(3)
    def att_pub(s_head, s_qb):
        n = uid[0]; uid[0] += 1
        g(f"s_cmp_lg_u32 {s(s_w)}, 0\ns_cbranch_scc1 {L('ap')}{n}")
        g(f"""s_lshl_b32 {s(s_p1)}, {s(s_qb)}, 5
        s_add_u32 {s(s_p1)}, {s(s_p1)}, {s(s_head)}
        s_lshl_b32 {s(s_p1)}, {s(s_p1)}, 7
        s_add_u32 {s(s_p1)}, {s(s_p1)}, {FL_O}""")
        get_nonce()
        flag_store(s_p1)
        g.label(f"{L('ap')}{n}")
        stamp(5)
    def att_hook(s_c):
        n = uid[0]; uid[0] += 1
        g(f"""s_cmp_gt_u32 {s(s_c)}, 1
        s_cbranch_scc1 {L('ah')}{n}
        s_cmp_eq_u32 {s(s_c)}, 1
        s_cbranch_scc1 {L('ah1')}{n}
        v_mov_b32 v0, 0
        global_load_dword v0, v0, {sr(SD,2)} sc0 sc1
        s_branch {L('ah')}{n}""")
        g.label(f"{L('ah1')}{n}")
        g(f"""s_cmp_lg_u32 {s(s_nonce)}, 0
        s_cbranch_scc1 {L('ah')}{n}
        v_readfirstlane_b32 {s(s_nonce)}, v0""")
        g.label(f"{L('ah')}{n}")
    LB = lambda x: f"fk_a_{x}"
    gen_att_role(g, LB, dict(SX=SX, SG=SAUX, SWS=SWS, s_id=s_id, s_w=s_w), sc1=sc1, wait_fn=att_wait, publish_fn=att_pub, gate=False, prio=prio_att, prof=prof, split=att_split, sync_hook=att_hook, epi_prio=3, ready=(ready_a if two else None), post_issue=(nonce_pub_once if two else None), sc1_in=(False if two else None), pre_publish=lambda: stamp(4), stamps=((lambda k: stamp({2: 1, 3: 2}[k]) if k in (2, 3) else None) if (two and stamps) else None), **att_kw)
    g(f"s_branch {L('end')}")
    g.label(L('frole'))
    if fnone: g(f"s_branch {L('exit')}")
    SGW = 84
    g.srd(SWA, "w1"); g.srd(SAUX, "b1"); g.srd(SW2, "w2"); g.srd(SWO, "wo"); g.srd(SB2, "b2"); g.srd(SOUT, "out"); g.srd(SGW, "gw")
    g(f"s_sub_u32 {s(s_id)}, s2, 256\ns_waitcnt lgkmcnt(0)\ns_mov_b32 s12, s58\ns_mov_b32 s13, s59")
    for r, k in ((SX, "ax"), (SWS, "ws"), (SWA, "w1"), (SAUX, "b1"), (SW2, "w2"), (SWO, "wo"), (SB2, "b2"), (SOUT, "out"), (SGW, "gw")): g.srd_fin(r, k)
    if fwait and not two:
        if single5:
            g(f"""s_and_b32 {s(s_p1)}, {s(s_id)}, 7
            s_lshr_b32 {s(s_p2)}, {s(s_id)}, 3
            s_lshr_b32 s40, {s(s_p1)}, 1
            s_lshl_b32 s40, s40, 2
            s_and_b32 s41, {s(s_p2)}, 3
            s_add_u32 s40, s40, s41                 ; mt
            s_and_b32 s41, {s(s_p1)}, 1
            s_lshl_b32 s41, s41, 3
            s_lshr_b32 {s(s_p2)}, {s(s_p2)}, 2
            s_add_u32 s41, s41, {s(s_p2)}           ; nt
            s_cmp_ge_u32 s41, 15
            s_cbranch_scc1 {L('fgo')}
            s_cmp_lg_u32 {s(s_w)}, 0
            s_cbranch_scc1 {L('fw')}""")
            get_nonce()
            g(f"""s_lshl_b32 s41, s41, 4
            s_add_u32 s40, s40, s41
            s_lshl_b32 s40, s40, 7
            s_add_u32 s40, s40, {FL_QLD}
            v_mov_b32 {v(vq[0])}, s40""")
        else:
            if fall:
                g(f"s_cmp_ge_u32 {s(s_id)}, 192\ns_cselect_b32 s50, 192, 0\ns_sub_u32 s50, {s(s_id)}, s50")
            else:
                g(f"s_cmp_ge_u32 {s(s_id)}, 192\ns_cbranch_scc1 {L('fgo')}\ns_mov_b32 s50, {s(s_id)}")
            g(f"""s_cmp_lg_u32 {s(s_w)}, 0
            s_cbranch_scc1 {L('fw')}""")
            get_nonce()
            g(f"""s_and_b32 {s(s_p1)}, s50, 7
            s_lshr_b32 {s(s_p2)}, s50, 3
            s_lshr_b32 s40, {s(s_p1)}, 1
            s_lshl_b32 s40, s40, 2
            s_and_b32 s41, {s(s_p2)}, 3
            s_add_u32 s40, s40, s41                 ; mt
            s_and_b32 s41, {s(s_p1)}, 1
            s_mul_i32 s41, s41, 6
            s_lshr_b32 {s(s_p2)}, {s(s_p2)}, 2
            s_add_u32 s41, s41, {s(s_p2)}           ; nt
            s_lshl_b32 s41, s41, 4
            s_add_u32 s40, s40, s41
            s_lshl_b32 s40, s40, 7
            s_add_u32 s40, s40, {FL_QLD}
            v_mov_b32 {v(vq[0])}, s40""")
        poll(1, 0)
        g.label(L('fw'))
        g("s_barrier")
        g.label(L('fgo'))
    g("s_setprio 3")
    stamp(1)
    def f1_pub(s_mt, s_nt):
        stamp(2)
        g(f"""s_lshl_b32 {s(s_p1)}, {s(s_mt)}, 4
        s_add_u32 {s(s_p1)}, {s(s_p1)}, {s(s_nt)}
        s_lshl_b32 {s(s_p1)}, {s(s_p1)}, 7
        s_add_u32 {s(s_p1)}, {s(s_p1)}, {FL_H}""")
        publish(s_p1)
    PF = dict(SW2=SW2, SWO=SWO, SB2=SB2, SOUT=SOUT, SWS=SWS, s_id=s_id, s_w=s_w)
    def f_pre(mt, nt):
        gen_gate2(g, SX, SGW, SWS, mt, nt, s_w, sc1)
        if l2warm:
            g(f"""s_lshl_b32 s53, {s(s_id)}, 6
            v_add_u32 v118, s53, v1
            v_lshlrev_b32 v118, 7, v118
            s_cmp_eq_u32 {s(s_w)}, 0
            s_cbranch_scc0 {L('l2w1')}
            buffer_load_dword v119, v118, {sr(SW2,4)}, 0 offen""")
            g.label(L('l2w1'))
            g(f"""s_cmp_eq_u32 {s(s_w)}, 1
            s_cbranch_scc0 {L('l2w2')}
            buffer_load_dword v119, v118, {sr(SWO,4)}, 0 offen""")
            g.label(L('l2w2'))
        if fin_early is True: gen_fin_role(g, lambda x: f"fk_fec_{x}", PF, early_only="compute")
    def f_post_first():
        if fin_early: gen_fin_role(g, lambda x: f"fk_fel_{x}", PF, early_only="loader")
    LC = lambda x: f"fk_1_{x}"
    gen_ffn1_role(g, LC, dict(SX=SX, SW1=SWA, SB1=SAUX, SWS=SWS, s_id=s_id, s_w=s_w), sc1=sc1, publish_fn=f1_pub, skip=fskip, trace=trace, epi_prio=3, loop_prio=prio_f, ld_prio=prio_fl, pre_compute=f_pre, post_first=f_post_first, **f1_kw)
    def wait_h(s_mb, loader):
        n = uid[0]; uid[0] += 1
        if not loader:
            g(f"s_cmp_lg_u32 {s(s_w)}, 0\ns_cbranch_scc1 {L('wh')}{n}")
            get_nonce()
            g(f"""s_lshr_b32 {s(s_p1)}, {s(s_mb)}, 1
            s_lshl_b32 {s(s_p1)}, {s(s_p1)}, 11
            s_add_u32 {s(s_p1)}, {s(s_p1)}, {FL_H}
            v_lshlrev_b32 {v(vq[0])}, 7, v1
            v_add_u32 {v(vq[0])}, {s(s_p1)}, {v(vq[0])}""")
            poll(0xffff, 0)
            g.label(f"{L('wh')}{n}")
        g("s_barrier")
        if not loader:
            stamp(3)
    def o_prepoll(s_mb):
        n = uid[0]; uid[0] += 1
        g(f"s_cmp_lg_u32 {s(s_w)}, 0\ns_cbranch_scc1 {L('op')}{n}")
        g(f"""s_lshr_b32 {s(s_p1)}, {s(s_mb)}, 2
        s_lshl_b32 {s(s_p1)}, {s(s_p1)}, 12
        s_add_u32 {s(s_p1)}, {s(s_p1)}, {FL_O}
        v_lshlrev_b32 v127, 7, v1
        v_add_u32 v127, {s(s_p1)}, v127
        s_mov_b32 exec_hi, 0
        buffer_load_dword v126, v127, {sr(SWS,4)}, 0 offen sc0 sc1
        s_mov_b32 exec_hi, -1""")
        g.label(f"{L('op')}{n}")
    def wait_o(s_mb, loader):
        n = uid[0]; uid[0] += 1
        if not loader:
            stamp(4)
            g(f"s_cmp_lg_u32 {s(s_w)}, 0\ns_cbranch_scc1 {L('wo')}{n}")
            if prepoll:
                g(f"""s_waitcnt vmcnt(0)
                s_mov_b32 exec_hi, 0
                v_cmp_ne_u32 vcc, {s(s_nonce)}, v126
                s_mov_b32 exec_hi, -1
                s_cbranch_vccz {L('wo')}{n}
                v_mov_b32 {v(vq[0])}, v127""")
            else:
                g(f"""s_lshr_b32 {s(s_p1)}, {s(s_mb)}, 2
                s_lshl_b32 {s(s_p1)}, {s(s_p1)}, 12
                s_add_u32 {s(s_p1)}, {s(s_p1)}, {FL_O}
                v_lshlrev_b32 {v(vq[0])}, 7, v1
                v_add_u32 {v(vq[0])}, {s(s_p1)}, {v(vq[0])}""")
            poll(-1, 0)
            g.label(f"{L('wo')}{n}")
        g("s_barrier")
        if not loader:
            stamp(5)
            g("s_setprio 3")
    def dyn_init(s_mb, ord_off):
        stamp(4)
        get_nonce()
        g(f"""s_lshr_b32 {s(s_p1)}, {s(s_mb)}, 2
        s_lshl_b32 {s(s_p1)}, {s(s_p1)}, 12
        s_add_u32 {s(s_p1)}, {s(s_p1)}, {FL_O}
        v_lshlrev_b32 v127, 7, v1
        v_add_u32 v127, {s(s_p1)}, v127
        s_mov_b32 s88, 0
        s_mov_b32 s89, 0
        s_mov_b32 s90, {ord_off}
        s_mov_b32 s91, 0
        s_mov_b32 s94, 0""")
    def dyn_load():
        g(f"""s_mov_b32 exec_hi, 0
        buffer_load_dword v126, v127, {sr(SWS,4)}, 0 offen sc0 sc1
        s_mov_b32 exec_hi, -1""")
    def dyn_issue():
        pass
    def dyn_finish(tag):
        g(f"""s_andn2_b32 s92, s94, s88
        s_cbranch_scc1 {L('dg' + tag)}""")
        g.label(L('df' + tag))
        dyn_load()
        g(f"""s_waitcnt vmcnt(0)
        s_mov_b32 exec_hi, 0
        v_cmp_eq_u32 vcc, {s(s_nonce)}, v126
        s_mov_b32 exec_hi, -1
        s_nop 1
        s_lshr_b32 s92, vcc_lo, 1
        s_and_b32 s92, s92, vcc_lo
        s_lshr_b32 s93, s92, 2
        s_and_b32 s92, s92, s93
        s_and_b32 s94, s92, 0x11111111
        s_andn2_b32 s92, s94, s88
        s_cbranch_scc1 {L('dg' + tag)}
        s_add_u32 s91, s91, 1
        s_cmp_gt_u32 s91, 0x20000
        s_cbranch_scc1 {L('exit_full')}
        s_sleep 1
        s_branch {L('df' + tag)}""")
        g.label(L('dg' + tag))
        g(f"""s_ff1_i32_b32 s93, s92
        s_bitset1_b32 s88, s93
        s_lshl_b32 s92, s89, 2
        s_add_u32 s92, s92, s90
        v_mov_b32 v126, s93
        v_mov_b32 v119, s92
        s_add_u32 s89, s89, 1
        s_mov_b64 exec, 1
        ds_write_b32 v119, v126
        s_mov_b64 exec, -1""")
    def dyn_after():
        stamp(5)
        g("s_setprio 3")
    DYN = dict(init=dyn_init, issue=dyn_issue, finish=dyn_finish, after=dyn_after) if dyn else None
    LD = lambda x: f"fk_f_{x}"
    gen_fin_role(g, LD, dict(SW2=SW2, SWO=SWO, SB2=SB2, SOUT=SOUT, SWS=SWS, s_id=s_id, s_w=s_w), sc1=sc1, wait_h=wait_h, wait_o=wait_o, skip=(fskip if not fskip2 else fskip2), trace=trace, loop_prio=prio_f2, ld_prio=prio_fl, early=fin_early, dyn=DYN, pre_poll=(o_prepoll if prepoll else None), **fin_kw, stamps=((lambda k: stamp({3: 1, 5: 2}[k]) if k in (3, 5) else None) if (stamps and fintrace) else None))
    g.label(L('end'))
    if stamps and dbgdump:
        g("s_waitcnt vmcnt(0)"); stamp(6); g("s_waitcnt lgkmcnt(0)")
    if stamps and not dbgdump:
        g("s_waitcnt vmcnt(0)"); stamp(6)
        g(f"""s_waitcnt lgkmcnt(0)
        s_mov_b64 exec, 1
        s_lshl_b32 s40, s2, 3
        s_add_u32 s40, s40, {s(s_w)}
        s_lshl_b32 s40, s40, 5
        s_add_u32 s40, s40, {WS_STAMP}
        v_mov_b32 v1, 0""")
        for k in range(7): g(f"v_mov_b32 v{8+k}, s{64+2*k}")
        g("s_sub_u32 s80, s82, s80\nv_mov_b32 v15, s80")
        if prof: g("v_mov_b32 v8, s90\nv_mov_b32 v9, s91")
        g(f"buffer_store_dwordx4 v[8:11], v1, {sr(SWS,4)}, s40 offen\nbuffer_store_dwordx4 v[12:15], v1, {sr(SWS,4)}, s40 offen offset:16")
    if dbgdump:
        g(f"""s_cmp_lg_u32 {s(s_w)}, 0
        s_cbranch_scc1 {L('nodump')}
        s_mov_b64 exec, 1
        v_mov_b32 v1, 0
        s_mov_b32 s41, {WS_STAMP + 0x80000}
        buffer_load_dwordx4 v[4:7], v1, {sr(SWS,4)}, s41 offen sc1
        buffer_load_dword v8, v1, {sr(SWS,4)}, s41 offen offset:16 sc1
        s_waitcnt vmcnt(0)
        s_lshr_b32 s40, s2, 8
        s_mul_i32 s40, s40, 28
        s_add_u32 s40, s40, 4
        v_mov_b32 v20, s40""")
        for k in range(7):
            g(f"v_sub_u32 v3, s{64+2*k}, v4\nglobal_atomic_umax v20, v3, {sr(SD,2)} offset:{4*k}")
        g(f"""s_cmp_lg_u32 s2, 256
        s_cbranch_scc1 {L('nodump')}
        v_sub_u32 v8, v8, v4
        v_mov_b32 v20, 60
        global_store_dword v20, v8, {sr(SD,2)}""")
        g.label(L('nodump'))
        g("s_waitcnt vmcnt(0)")
    g(f"s_branch {L('exit')}")
    g.label(L('exit_full'))
    g("s_mov_b64 exec, -1")
    g.label(L('exit'))
    g("s_endpgm")
    g.kernel_end(name, 128)
    return dict(lds=81920 if single5 else 75264 + (256 if dyn else 0))

def build(**kw):
    body = Gen()
    if kw.get("two"):
        from k_qkv4 import gen_qkv4
        qkw = kw.pop("qkw", {})
        qkw.setdefault("codepf", ("main_kernel", 19712))
        i1 = gen_qkv4(body, name="qkv_kernel", **qkw)
        info = gen_fused(body, name="main_kernel", **kw)
        launches = [("qkv_kernel", 256, 512, i1["lds"]), ("main_kernel", 512, 512, info["lds"])]
        hdr = HDR + "".join(f"; @launch kernel={k} grid=({gx},1,1) block=({bx},1,1) lds={lds}\n" for k, gx, bx, lds in launches)
        return hdr + '.amdgcn_target "amdgcn-amd-amdhsa--gfx950"\n.text\n' + body.text(), launches
    info = gen_fused(body, **kw)
    hdr = HDR + f"; @launch grid=(512,1,1) block=(512,1,1) lds={info['lds']}\n"
    return hdr + '.amdgcn_target "amdgcn-amd-amdhsa--gfx950"\n.text\n' + body.text(), [(NAME, 512, 512, info["lds"])]
if __name__ == "__main__":
    txt, launches = build()
    out = sys.argv[1] if len(sys.argv) > 1 else "v3.s"
    open(out, "w").write(txt); print("wrote", out, len(txt))
```

```python
from common2 import *

NSLOT = 3

SEQ_DEFAULT = ["M1","e0","e1","e2","e3","M2","LK","e4","e5","e6","c0","c1","M3","e7","e8","e9","c2","c3","M4","LV","e10","e11","c4","e12","e13","c5","e14","e15","nop","c6","c7"]

def gen_att_role(g, L, P, sc1=False, sched=None, stamps=None, wait_fn=None, publish_fn=None, prio=None, prof=False, split=False, gate=True, stag=False, vmask=False, xs=(), dma_old=False, sync_hook=None, epi_prio=None, pre_publish=None, ready=None, post_issue=None, sc1_in=None, kstag=True, pair=False, swap_prio=None, n0=4, dma_grp=0):
    KR = 512 if pair else 256
    VO = 1024 + KR
    KVT = VO + 1344
    SLOT = 8 * KVT
    XCH = 2 * SLOT
    LDS_FLAG = XCH + 24576
    ATT_LDS = LDS_FLAG + 64
    NKP = 64 + KR // 16
    NP = NKP + 84
    SWS, SX, SG = P["SWS"], P["SX"], P["SG"]
    s_id, s_w = P["s_id"], P["s_w"]
    sfx = " sc1" if sc1 else ""
    sfi = sfx if sc1_in is None else (" sc1" if sc1_in else "")
    s_head, s_qb, s_qg, s_kh, s_t0, s_t1, s_t2 = 40, 41, 42, 43, 44, 45, 46
    s_m0, s_c, s_dlt, s_slot, s_fb, s_dslot, s_cc = 47, 48, 49, 50, 51, 52, 53
    v_lane = 1; T = [68, 69, 70, 71, 72, 73, 74, 75]
    Qm = [10, 14]; Qr = [18, 20]
    KmB, KrB = [22, 2], [26, 6]
    V0B, V1B = [28, 124], [32, 120]
    Km, Kr, V0, V1 = 22, 26, 28, 32
    Pp = [36, 44]; Sx = [52, 68]; O = [84, 100]
    aK, aR, aV = 116, 117, 118
    vd = [119, 8, 9]
    M = [36, 37]
    SEQ = sched or SEQ_DEFAULT
    g(f"""s_and_b32 {s(s_t0)}, {s(s_id)}, 7
    s_lshl_b32 {s(s_t0)}, {s(s_t0)}, 2
    s_bfe_u32 {s(s_t1)}, {s(s_id)}, 0x20003
    s_add_u32 {s(s_head)}, {s(s_t0)}, {s(s_t1)}
    s_lshr_b32 {s(s_qb)}, {s(s_id)}, 5
    s_and_b32 {s(s_qg)}, {s(s_w)}, 3
    s_lshr_b32 {s(s_kh)}, {s(s_w)}, 2
    s_mul_i32 {s(s_m0)}, {s(s_w)}, {KVT}
    s_mov_b32 {s(s_fb)}, 0""")
    gx, gw_ = Sx[0], Sx[0] + 8
    if gate:
        g(f"""s_lshl_b32 {s(s_t0)}, {s(s_qb)}, 8
        s_lshl_b32 {s(s_t1)}, {s(s_head)}, 3
        s_add_u32 {s(s_t0)}, {s(s_t0)}, {s(s_t1)}
        s_add_u32 {s(s_t0)}, {s(s_t0)}, {s(s_w)}
        s_mul_i32 {s(s_t1)}, {s(s_t0)}, 1280
        s_lshl_b32 {s(s_t2)}, {s(s_t0)}, 2
        s_add_u32 {s(s_t2)}, {s(s_t2)}, {WS_G2}
        v_lshlrev_b32 {v(T[1])}, 5, {v(v_lane)}""")
        for i in range(16): g(f"v_mov_b32 {v(gx+i)}, 0")
        g(f"""s_mov_b32 exec_hi, 0xff
        buffer_load_dwordx4 {vr(gx,4)}, {v(T[1])}, {sr(SX,4)}, {s(s_t1)} offen
        buffer_load_dwordx4 {vr(gx+4,4)}, {v(T[1])}, {sr(SX,4)}, {s(s_t1)} offen offset:16
        buffer_load_dwordx4 {vr(gw_,4)}, {v(T[1])}, {sr(SG,4)}, 0 offen
        buffer_load_dwordx4 {vr(gw_+4,4)}, {v(T[1])}, {sr(SG,4)}, 0 offen offset:16
        s_mov_b32 exec_hi, -1""")
    s_hb, s_rb = 54, 55
    if pair:
        g(f"""s_lshr_b32 {s(s_hb)}, {s(s_head)}, 1
        s_mul_i32 {s(s_hb)}, {s(s_hb)}, 2560
        s_add_u32 {s(s_rb)}, {s(s_hb)}, 2048
        s_and_b32 {s(s_t0)}, {s(s_head)}, 1
        s_lshl_b32 {s(s_t0)}, {s(s_t0)}, 10
        s_add_u32 {s(s_hb)}, {s(s_hb)}, {s(s_t0)}""")
    else:
        g(f"s_mul_i32 {s(s_hb)}, {s(s_head)}, 1280\ns_add_u32 {s(s_rb)}, {s(s_hb)}, 1024")
    g(f"""s_add_u32 {s(s_t0)}, {s(s_hb)}, {T_K}                    ; K base
    s_lshr_b32 {s(s_t1)}, {s(s_head)}, 3
    s_mul_i32 {s(s_t1)}, {s(s_t1)}, {V_GS}
    s_add_u32 {s(s_t1)}, {s(s_t1)}, {T_V}
    s_and_b32 {s(s_c)}, {s(s_head)}, 7
    s_mul_i32 {s(s_c)}, {s(s_c)}, 320                        ; 20*(head&7)*16
    v_lshlrev_b32 {v(vd[0])}, 4, {v(v_lane)}
    v_add_u32 {v(vd[0])}, {s(s_t0)}, {v(vd[0])}""")
    for j in (1, 2):
        g(f"""v_add_u32 {v(T[2])}, {64*j - NKP}, {v(v_lane)}
        v_max_i32 {v(T[3])}, 0, {v(T[2])}
        v_mul_u32_u24 {v(T[4])}, 3121, {v(T[3])}
        v_lshrrev_b32 {v(T[4])}, 16, {v(T[4])}                ; uh = q/21
        v_mul_u32_u24 {v(T[5])}, 21, {v(T[4])}
        v_sub_u32 {v(T[5])}, {v(T[3])}, {v(T[5])}             ; d
        v_mul_u32_u24 {v(T[4])}, 2560, {v(T[4])}
        v_lshl_add_u32 {v(T[4])}, {v(T[5])}, 4, {v(T[4])}
        v_add_u32 {v(T[4])}, {s(s_c)}, {v(T[4])}
        v_cmp_eq_u32 vcc, 20, {v(T[5])}
        v_mov_b32 {v(T[6])}, 10240
        s_nop 0
        v_cndmask_b32 {v(T[4])}, {v(T[4])}, {v(T[6])}, vcc
        v_add_u32 {v(vd[j])}, {s(s_t1)}, {v(T[4])}""")
        if j == 1:
            g(f"""v_lshlrev_b32 {v(T[6])}, 4, {v(v_lane)}
            v_add_u32 {v(T[6])}, {T_K}, {v(T[6])}
            v_add_u32 {v(T[6])}, {s(s_rb)}, {v(T[6])}
            v_cmp_gt_i32 vcc, 0, {v(T[2])}
            s_nop 1
            v_cndmask_b32 {v(vd[1])}, {v(vd[1])}, {v(T[6])}, vcc""")
        g(f"v_subrev_u32 {v(vd[j])}, {1024*j}, {v(vd[j])}")
    if ready: ready()
    if not gate:
        pass
    def dma(s_chunk, s_lds):
        g(f"""s_lshl_b32 {s(s_t2)}, {s(s_chunk)}, 3
        s_add_u32 {s(s_t2)}, {s(s_t2)}, {s(s_w)}
        s_mul_i32 {s(s_t2)}, {s(s_t2)}, {TSG}
        s_mov_b32 m0, {s(s_lds)}
        s_add_u32 {s(s_t2)}, {s(s_t2)}, {WS_T}
        buffer_load_dwordx4 {v(vd[0])}, {sr(SWS,4)}, {s(s_t2)} offen{sfi} lds
        buffer_load_dwordx4 {v(vd[1])}, {sr(SWS,4)}, {s(s_t2)} offen offset:1024{sfi} lds
        s_mov_b32 exec_hi, {(1 << (NP - 128 - 32)) - 1}
        buffer_load_dwordx4 {v(vd[2])}, {sr(SWS,4)}, {s(s_t2)} offen offset:2048{sfi} lds
        s_mov_b32 exec_hi, -1""")
    def next_cc():
        g(f"s_add_u32 {s(s_cc)}, {s(s_cc)}, 1\ns_and_b32 {s(s_cc)}, {s(s_cc)}, 7")
    def dma_first2():
        g(f"s_mov_b32 {s(s_cc)}, {s(s_qb) if kstag else 0}\ns_mov_b32 {s(s_t1)}, {s(s_m0)}")
        dma(s_cc, s_t1); next_cc()
        g(f"s_add_u32 {s(s_t1)}, {s(s_t1)}, {SLOT}")
        dma(s_cc, s_t1); next_cc()
    def _issue():
        if wait_fn: wait_fn(s_head, s_qb)
        if stamps: stamps(1)
        g(f"""s_lshl_b32 {s(s_t1)}, {s(s_qb)}, 3
        s_lshl_b32 {s(s_t2)}, {s(s_qg)}, 1
        s_add_u32 {s(s_t1)}, {s(s_t1)}, {s(s_t2)}
        s_mul_i32 {s(s_t1)}, {s(s_t1)}, {TSG}
        s_add_u32 {s(s_t1)}, {s(s_t1)}, {WS_T + T_Q}
        s_add_u32 {s(s_t0)}, {s(s_t1)}, {s(s_hb)}
        s_add_u32 {s(s_t2)}, {s(s_t1)}, {s(s_rb)}
        s_and_b32 {s(s_t1)}, {s(s_head)}, {1 if pair else 0}
        s_lshl_b32 {s(s_t1)}, {s(s_t1)}, 3
        s_add_u32 {s(s_t2)}, {s(s_t2)}, {s(s_t1)}
        v_lshlrev_b32 {v(T[0])}, {4 if pair else 3}, {v(v_lane)}
        v_lshlrev_b32 {v(T[1])}, 4, {v(v_lane)}""")
        for j in range(2): g(f"v_mov_b32 {v(Qr[j])}, 0\nv_mov_b32 {v(Qr[j]+1)}, 0")
        g(f"""s_add_u32 {s(s_t1)}, {s(s_t0)}, {TSG}
        buffer_load_dwordx4 {vr(Qm[0],4)}, {v(T[1])}, {sr(SWS,4)}, {s(s_t0)} offen{sfi}
        buffer_load_dwordx4 {vr(Qm[1],4)}, {v(T[1])}, {sr(SWS,4)}, {s(s_t1)} offen{sfi}
        s_add_u32 {s(s_t1)}, {s(s_t2)}, {TSG}
        s_mov_b32 exec_hi, 0
        buffer_load_dwordx2 {vr(Qr[0],2)}, {v(T[0])}, {sr(SWS,4)}, {s(s_t2)} offen{sfi}
        buffer_load_dwordx2 {vr(Qr[1],2)}, {v(T[0])}, {sr(SWS,4)}, {s(s_t1)} offen{sfi}
        s_mov_b32 exec_hi, -1""")
        dma_first2()

        if post_issue: post_issue()
    if not gate: _issue()
    g(f"""s_mul_i32 {s(s_t0)}, {s(s_kh)}, {n0*KVT}
    v_lshlrev_b32 {v(aK)}, 4, {v(v_lane)}
    v_add_u32 {v(aK)}, {s(s_t0)}, {v(aK)}
    v_and_b32 {v(T[0])}, 31, {v(v_lane)}
    v_lshrrev_b32 {v(T[1])}, 5, {v(v_lane)}
    v_lshlrev_b32 {v(aR)}, {4 if pair else 3}, {v(T[0])}
    s_and_b32 {s(s_t1)}, {s(s_head)}, {1 if pair else 0}
    s_lshl_b32 {s(s_t1)}, {s(s_t1)}, 3
    s_add_u32 {s(s_t1)}, {s(s_t1)}, 1024
    v_add_u32 {v(aR)}, {s(s_t1)}, {v(aR)}
    v_cmp_eq_u32 vcc, 1, {v(T[1])}
    v_mov_b32 {v(T[2])}, {VO + 320}
    s_nop 0
    v_cndmask_b32 {v(aR)}, {v(aR)}, {v(T[2])}, vcc
    v_add_u32 {v(aR)}, {s(s_t0)}, {v(aR)}
    v_min_u32 {v(T[2])}, 20, {v(T[0])}
    v_cmp_le_u32 vcc, 28, {v(T[0])}
    v_mul_u32_u24 {v(T[3])}, 21, {v(T[1])}
    s_nop 0
    v_cndmask_b32 {v(T[2])}, {v(T[2])}, 4, vcc
    v_add_u32 {v(T[2])}, {v(T[2])}, {v(T[3])}
    v_lshlrev_b32 {v(aV)}, 4, {v(T[2])}
    v_add_u32 {v(aV)}, {s(s_t0)}, {v(aV)}
    v_mov_b32 {v(T[4])}, 0
    v_mov_b32 {v(T[5])}, {LDS_FLAG}
    ds_write_b32 {v(T[5])}, {v(T[4])}""")
    if gate:
        acc = T[6]
        g(f"s_waitcnt vmcnt(0)\nv_mov_b32 {v(acc)}, 0")
        for i in range(8): g(f"v_dot2_f32_bf16 {v(acc)}, {v(gx+i)}, {v(gw_+i)}, {v(acc)}")
        g("s_nop 3")
        for dpp in ["row_shr:1", "row_shr:2", "row_shr:4", "row_shr:8", "row_bcast:15 row_mask:0xa", "row_bcast:31 row_mask:0xc"]:
            g(f"s_nop 1\nv_add_f32_dpp {v(acc)}, {v(acc)}, {v(acc)} {dpp} bank_mask:0xf" if "row_mask" in dpp else f"s_nop 1\nv_add_f32_dpp {v(acc)}, {v(acc)}, {v(acc)} {dpp} row_mask:0xf bank_mask:0xf bound_ctrl:0")
        g(f"""v_mul_f32 {v(acc)}, {f32hex(-1.4426950408889634)}, {v(acc)}
        v_exp_f32 {v(acc)}, {v(acc)}
        s_nop 0
        v_add_f32 {v(acc)}, 1.0, {v(acc)}
        v_rcp_f32 {v(acc)}, {v(acc)}
        v_mov_b32 {v(T[7])}, 0
        s_mov_b32 exec_lo, 0
        s_mov_b32 exec_hi, 0x80000000
        buffer_store_dword {v(acc)}, {v(T[7])}, {sr(SWS,4)}, {s(s_t2)} offen{sfx}
        s_mov_b64 exec, -1""")
    if gate: _issue()
    def qk16(dst, X, b=0): g(f"v_mfma_f32_32x32x16_bf16 {vr(Sx[dst],16)}, {vr(KmB[b],4)}, {vr(Qm[X],4)}, 0")
    def qk8(dst, X, b=0): g(f"v_mfma_f32_32x32x8_bf16 {vr(Sx[dst],16)}, {vr(KrB[b],2)}, {vr(Qr[X],2)}, {vr(Sx[dst],16)}")
    def pv(X, u, b=0): g(f"v_mfma_f32_32x32x16_bf16 {vr(O[X],16)}, {vr(V0B[b] if u == 0 else V1B[b],4)}, {vr(Pp[X]+4*u,4)}, {vr(O[X],16)}")
    def ldK(toff, b=0): g(f"ds_read_b128 {vr(KmB[b],4)}, {v(aK)} offset:{toff}\nds_read_b64 {vr(KrB[b],2)}, {v(aR)} offset:{toff}")
    def ldV(toff, b=0):
        if vmask: g("s_mov_b64 exec, s[82:83]")
        g(f"ds_read_b128 {vr(V0B[b],4)}, {v(aV)} offset:{toff+VO}\nds_read_b128 {vr(V1B[b],4)}, {v(aV)} offset:{toff+VO+672}")
        if vmask: g("s_mov_b64 exec, -1")
    def e(X, r): g(f"v_exp_f32 {v(Sx[X]+r)}, {v(Sx[X]+r)}")
    def cv(X, k): g(f"v_cvt_pk_bf16_f32 {v(Pp[X]+k)}, {v(Sx[X]+2*k)}, {v(Sx[X]+2*k+1)}")
    cnt = [0]
    def cs_sync():
        if "nosync" in xs: return
        if prof: g("s_memtime s[84:85]")
        g("s_waitcnt vmcnt(0)")
        if prof: g("s_memtime s[86:87]")
        g("s_barrier")
        if prof: g("s_memtime s[88:89]\ns_waitcnt lgkmcnt(0)\ns_sub_u32 s86, s86, s84\ns_add_u32 s90, s90, s86\ns_sub_u32 s88, s88, s84\ns_add_u32 s91, s91, s88")
        if sync_hook: sync_hook(s_c)
        g(f"""s_add_u32 {s(s_slot)}, {s(s_slot)}, {SLOT}
        s_cmp_ge_u32 {s(s_slot)}, {NSLOT*SLOT}
        s_cselect_b32 {s(s_slot)}, 0, {s(s_slot)}
        s_mov_b32 {s(s_dlt)}, {SLOT}
        s_cmov_b32 {s(s_dlt)}, {-(NSLOT-1)*SLOT}
        v_add_u32 {v(aK)}, {s(s_dlt)}, {v(aK)}
        v_add_u32 {v(aR)}, {s(s_dlt)}, {v(aR)}""")
    def cs_dma(kh=None):
        if "nodma" in xs: return
        if prof: g("s_memtime s[84:85]")
        cs_dma_(kh)
        if prof: g("s_memtime s[86:87]\ns_waitcnt lgkmcnt(0)\ns_sub_u32 s86, s86, s84\ns_add_u32 s79, s79, s86")
    def cs_dma_(kh=None):
        n = cnt[0]; cnt[0] += 1
        g(f"s_cmp_ge_u32 {s(s_c)}, 6\ns_cbranch_scc1 {L('nodma')}{n}")
        if kh is not None: g(f"s_cmp_lg_u32 {s(s_kh)}, {kh}\ns_cbranch_scc1 {L('nodma')}{n}")
        if dma_old and kh is None:
            g(f"s_cmp_lg_u32 {s(s_kh)}, {dma_grp}\ns_cbranch_scc1 {L('nodma')}{n}")
            g(f"s_add_u32 {s(s_t1)}, {s(s_dslot)}, {s(s_m0)}")
            dma(s_cc, s_t1)
            op_ = "s_add_u32" if dma_grp == 0 else "s_sub_u32"
            g(f"""{op_} {s(s_t2)}, {s(s_t2)}, {4*TSG}
            {op_} m0, {s(s_t1)}, {4*KVT}
            s_nop 0
            buffer_load_dwordx4 {v(vd[0])}, {sr(SWS,4)}, {s(s_t2)} offen{sfi} lds
            buffer_load_dwordx4 {v(vd[1])}, {sr(SWS,4)}, {s(s_t2)} offen offset:1024{sfi} lds
            s_mov_b32 exec_hi, {(1 << (NP - 128 - 32)) - 1}
            buffer_load_dwordx4 {v(vd[2])}, {sr(SWS,4)}, {s(s_t2)} offen offset:2048{sfi} lds
            s_mov_b32 exec_hi, -1""")
            next_cc()
        else:
            g(f"s_add_u32 {s(s_t1)}, {s(s_dslot)}, {s(s_m0)}")
            dma(s_cc, s_t1); next_cc()
        g(f"""s_add_u32 {s(s_dslot)}, {s(s_dslot)}, {SLOT}
        s_cmp_ge_u32 {s(s_dslot)}, {NSLOT*SLOT}
        s_cselect_b32 {s(s_dslot)}, 0, {s(s_dslot)}""")
        g.label(f"{L('nodma')}{n}")
    def chunk_switch():
        cs_sync(); cs_dma()
    def phase(X, i, n=4, grp=None):
        Y = 1 - X
        waited = False
        for op in SEQ:
            if op in ("M1", "M3") and not waited:
                waited = True
                if X == 1 and "nolds" not in xs: g("s_waitcnt lgkmcnt(4)")
            if op == "M1":
                if "nomfma" not in xs: qk16(Y, Y, (i + X) & 1)
            elif op == "M2":
                if "nomfma" not in xs: qk8(Y, Y, (i + X) & 1)
            elif op == "M3":
                if "nomfma" not in xs: pv(Y, 0, (i + 1 - X) & 1)
            elif op == "M4":
                if "nomfma" not in xs: pv(Y, 1, (i + 1 - X) & 1)
            elif op == "LK":
                if X == 0:
                    if i == n - 2:
                        cs_sync()
                        if not (dma_old and grp is not None and grp != dma_grp): cs_dma(0 if stag else None)
                    if i == n - 1 and stag: cs_dma(1)
                    if "nolds" not in xs: ldK(((i + 2) % n) * KVT, i & 1)
            elif op == "LV":
                if X == 0:
                    if i == n - 1: g(f"v_add_u32 {v(aV)}, {s(s_dlt)}, {v(aV)}")
                    if "nolds" not in xs: ldV(((i + 1) % n) * KVT, (i + 1) & 1)
            elif op == "nop": g("s_nop 0")
            elif op[0] == "e": e(X, int(op[1:]))
            elif op[0] == "c": cv(X, int(op[1:]))

    if prof: g("s_mov_b32 s90, 0\ns_mov_b32 s91, 0\ns_mov_b32 s79, 0")
    g.label(L('restart'))
    for X in range(2):
        for r in range(16): g(f"v_mov_b32 {v(O[X]+r)}, 0")
    for r in range(8): g(f"v_mov_b32 {v(Pp[1]+r)}, 0")
    for r in range(4): g(f"v_mov_b32 {v(V0B[1]+r)}, 0\nv_mov_b32 {v(V1B[1]+r)}, 0\nv_mov_b32 {v(V0B[0]+r)}, 0\nv_mov_b32 {v(V1B[0]+r)}, 0")
    if vmask: g("s_mov_b32 s82, 0x1fffff\ns_mov_b32 s83, 0x1fffff")
    g(f"""s_mov_b32 {s(s_c)}, 0
    s_mov_b32 {s(s_slot)}, 0
    s_mov_b32 {s(s_dslot)}, {2*SLOT}
    s_waitcnt vmcnt(3) lgkmcnt(0)
    s_barrier""")
    if stamps: stamps(2)
    ldK(0, 0); ldK(KVT, 1); ldV(0, 0)
    g("s_waitcnt lgkmcnt(4)")
    qk16(0, 0, 0); qk8(0, 0, 0)
    g("s_waitcnt lgkmcnt(0)\ns_nop 7\ns_nop 3")
    if prio is not None: g(f"s_setprio {prio}")
    if split:
        g(f"s_cmp_eq_u32 {s(s_kh)}, 0\ns_cbranch_scc1 {L('nosplit')}\ns_setprio {prio+2}")
        g.label(L('nosplit'))
    def loop_body(tag, n, grp):
        g.label(L('loop' + tag))
        for i in range(n):
            if swap_prio is not None and i in swap_prio:
                hi_kh = swap_prio[i]
                k_ = cnt[0]; cnt[0] += 1
                g(f"s_cmp_eq_u32 {s(s_kh)}, {hi_kh}\ns_cbranch_scc1 {L('sp')}{k_}\ns_setprio 1\ns_branch {L('sq')}{k_}")
                g.label(f"{L('sp')}{k_}"); g("s_setprio 2"); g.label(f"{L('sq')}{k_}")
            phase(0, i, n, grp); phase(1, i, n, grp)
        g(f"""s_add_u32 {s(s_c)}, {s(s_c)}, 1
        s_cmp_lt_u32 {s(s_c)}, 8
        s_cbranch_scc1 {L('loop' + tag)}""")
    if n0 == 4:
        loop_body("", 4, None)
    else:
        g(f"s_cmp_lg_u32 {s(s_kh)}, 0\ns_cbranch_scc1 {L('grp1')}")
        loop_body("a", n0, 0)
        g(f"s_branch {L('loopend')}")
        g.label(L('grp1'))
        loop_body("b", 8 - n0, 1)
        g.label(L('loopend'))
    if stamps: stamps(3)
    g("s_nop 1")
    pv(1, 0, 1); pv(1, 1, 1)
    g("s_waitcnt lgkmcnt(0)")
    if epi_prio is not None: g(f"s_setprio {epi_prio}")
    g(f"""s_mul_i32 {s(s_t0)}, {s(s_w)}, 3072
    s_add_u32 {s(s_t0)}, {s(s_t0)}, {XCH}
    v_lshlrev_b32 {v(T[0])}, 4, {v(v_lane)}
    v_add_u32 {v(T[1])}, {s(s_t0)}, {v(T[0])}
    s_xor_b32 {s(s_t1)}, {s(s_w)}, 4
    s_mul_i32 {s(s_t1)}, {s(s_t1)}, 3072
    s_add_u32 {s(s_t1)}, {s(s_t1)}, {XCH}
    v_add_u32 {v(T[2])}, {s(s_t1)}, {v(T[0])}
    s_nop 3
    s_cmp_eq_u32 {s(s_kh)}, 0
    s_cbranch_scc1 {L('kh0')}""")
    for q in range(3): g(f"ds_write_b128 {v(T[1])}, {vr(O[0]+4*q,4)} offset:{q*1024}")
    for r in range(12): g(f"v_mov_b32 {v(O[0]+r)}, {v(O[1]+r)}")
    g(f"s_branch {L('sent')}")
    g.label(L('kh0'))
    g("s_nop 7")
    for q in range(3): g(f"ds_write_b128 {v(T[1])}, {vr(O[1]+4*q,4)} offset:{q*1024}")
    g.label(L('sent'))
    R = Sx[0]
    g("s_waitcnt lgkmcnt(0)\ns_barrier")
    for q in range(3): g(f"ds_read_b128 {vr(R+4*q,4)}, {v(T[2])} offset:{q*1024}")
    g(f"""v_and_b32 {v(T[0])}, 31, {v(v_lane)}
    v_mul_u32_u24 {v(T[0])}, 48, {v(T[0])}
    v_lshrrev_b32 {v(T[1])}, 5, {v(v_lane)}
    v_lshl_add_u32 {v(T[0])}, {v(T[1])}, 3, {v(T[0])}
    s_lshl_b32 {s(s_t0)}, {s(s_w)}, 11
    s_add_u32 {s(s_t0)}, {s(s_t0)}, 24576
    v_add_u32 {v(T[0])}, {s(s_t0)}, {v(T[0])}
    v_lshlrev_b32 {v(T[2])}, 4, {v(v_lane)}
    v_add_u32 {v(T[1])}, {s(s_t0)}, {v(T[2])}
    s_lshl_b32 {s(s_t0)}, {s(s_qb)}, 8
    s_lshl_b32 {s(s_t1)}, {s(s_qg)}, 6
    s_add_u32 {s(s_t0)}, {s(s_t0)}, {s(s_t1)}
    s_lshl_b32 {s(s_t1)}, {s(s_kh)}, 5
    s_add_u32 {s(s_t0)}, {s(s_t0)}, {s(s_t1)}
    s_mul_i32 {s(s_t0)}, {s(s_t0)}, 48
    s_mul_i32 {s(s_t1)}, {s(s_head)}, {O_HS}
    s_add_u32 {s(s_t0)}, {s(s_t0)}, {s(s_t1)}
    s_add_u32 {s(s_t0)}, {s(s_t0)}, {WS_O2}
    s_waitcnt lgkmcnt(0)""")
    Fo = O[0]
    for r in range(12): g(f"v_add_f32 {v(Fo+r)}, {v(Fo+r)}, {v(R+r)}")
    g(f"""v_mov_b32 {v(T[3])}, {v(Fo+8)}
    v_mov_b32 {v(T[4])}, {v(Fo+8)}
    s_nop 1
    v_permlane32_swap_b32 {v(T[3])}, {v(T[4])}
    s_nop 1
    v_rcp_f32 {v(T[5])}, {v(T[4])}
    v_mov_b32 {v(T[6])}, 0""")
    for r in range(12): g(f"v_mul_f32 {v(Fo+r)}, {v(Fo+r)}, {v(T[5])}")
    for r in range(12): g(f"v_fma_f32 {v(T[6])}, {v(Fo+r)}, 0, {v(T[6])}")
    g(f"""s_mov_b32 exec_lo, 0
    v_mov_b32 {v(Fo+8)}, 0
    v_mov_b32 {v(Fo+9)}, 0
    v_mov_b32 {v(Fo+10)}, 0
    v_mov_b32 {v(Fo+11)}, 0
    s_mov_b32 exec_lo, -1""")
    for q in range(3):
        g(f"v_cvt_pk_bf16_f32 {v(R+2*q)}, {v(Fo+4*q)}, {v(Fo+4*q+1)}\nv_cvt_pk_bf16_f32 {v(R+2*q+1)}, {v(Fo+4*q+2)}, {v(Fo+4*q+3)}")
    g(f"""ds_write_b64 {v(T[0])}, {vr(R,2)}
    ds_write_b64 {v(T[0])}, {vr(R+2,2)} offset:16
    ds_write_b64 {v(T[0])}, {vr(R+4,2)} offset:32
    v_cmp_o_f32 vcc, {v(T[6])}, {v(T[6])}
    s_mov_b32 {s(s_t1)}, 0x21800000
    v_cmp_lt_f32 s[92:93], {s(s_t1)}, {v(T[4])}
    s_mov_b32 {s(s_t1)}, 0x5d800000
    v_cmp_gt_f32 s[94:95], {s(s_t1)}, {v(T[4])}
    s_waitcnt lgkmcnt(0)
    ds_read_b128 {vr(R+8,4)}, {v(T[1])}
    ds_read_b128 {vr(R+12,4)}, {v(T[1])} offset:1024
    s_and_b64 vcc, vcc, s[92:93]
    s_and_b64 vcc, vcc, s[94:95]
    s_cmp_eq_u64 vcc, -1
    s_cbranch_scc1 {L('ok')}
    v_mov_b32 {v(T[6])}, 1
    v_mov_b32 {v(T[7])}, {LDS_FLAG}
    ds_write_b32 {v(T[7])}, {v(T[6])}""")
    g.label(L('ok'))
    g(f"""s_waitcnt lgkmcnt(0)
    buffer_store_dwordx4 {vr(R+8,4)}, {v(T[2])}, {sr(SWS,4)}, {s(s_t0)} offen{sfx}
    s_mov_b32 exec_hi, 0
    buffer_store_dwordx4 {vr(R+12,4)}, {v(T[2])}, {sr(SWS,4)}, {s(s_t0)} offen offset:1024{sfx}
    s_mov_b32 exec_hi, -1
    v_mov_b32 {v(T[7])}, {LDS_FLAG}""")
    if pre_publish: pre_publish()
    g(f"""s_waitcnt vmcnt(0)
    s_barrier
    ds_read_b32 {v(T[6])}, {v(T[7])}
    s_waitcnt lgkmcnt(0)
    v_readfirstlane_b32 {s(s_t2)}, {v(T[6])}
    s_xor_b32 {s(s_t1)}, {s(s_fb)}, 1
    s_nop 2
    s_and_b32 {s(s_t2)}, {s(s_t2)}, {s(s_t1)}
    s_cmp_lg_u32 {s(s_t2)}, 0
    s_cbranch_scc1 {L('fallback')}""")
    if publish_fn: publish_fn(s_head, s_qb)
    g(f"s_branch {L('att_done')}")
    g.label(L('fallback'))
    g(f"s_mov_b32 {s(s_fb)}, 1")
    back = (8 % NSLOT) * SLOT
    def rewind():
        for a in (aK, aR, aV): g(f"v_subrev_u32 {v(a)}, {back}, {v(a)}")
    rewind()
    g("s_barrier")
    dma_first2()
    for X in range(2): g(f"v_mov_b32 {v(M[X])}, 0xff800000")
    g(f"""s_mov_b32 {s(s_c)}, 0
    s_mov_b32 {s(s_slot)}, 0
    s_mov_b32 {s(s_dslot)}, {2*SLOT}
    s_waitcnt vmcnt(3)
    s_barrier""")
    def mx_body(tag, n):
        g.label(L('mxloop' + tag))
        for i in range(n):
            ldK(i * KVT)
            g("s_waitcnt lgkmcnt(0)")
            for X in range(2):
                qk16(X, X); qk8(X, X)
            g("s_nop 15\ns_nop 7")
            for X in range(2):
                for r in range(0, 16, 2): g(f"v_max3_f32 {v(M[X])}, {v(M[X])}, {v(Sx[X]+r)}, {v(Sx[X]+r+1)}")
        chunk_switch()
        g(f"""v_add_u32 {v(aV)}, {s(s_dlt)}, {v(aV)}
        s_add_u32 {s(s_c)}, {s(s_c)}, 1
        s_cmp_lt_u32 {s(s_c)}, 8
        s_cbranch_scc1 {L('mxloop' + tag)}""")
    if n0 == 4:
        mx_body("", 4)
    else:
        g(f"s_cmp_lg_u32 {s(s_kh)}, 0\ns_cbranch_scc1 {L('mgrp1')}")
        mx_body("a", n0)
        g(f"s_branch {L('mxend')}")
        g.label(L('mgrp1'))
        mx_body("b", 8 - n0)
        g.label(L('mxend'))
    rewind()
    for X in range(2):
        g(f"""v_mov_b32 {v(T[0])}, {v(M[X])}
        v_mov_b32 {v(T[1])}, {v(M[X])}
        s_nop 1
        v_permlane32_swap_b32 {v(T[0])}, {v(T[1])}
        s_nop 1
        v_max_f32 {v(M[X])}, {v(T[0])}, {v(T[1])}""")
    g(f"""s_lshl_b32 {s(s_t0)}, {s(s_w)}, 9
    v_lshlrev_b32 {v(T[0])}, 3, {v(v_lane)}
    v_add_u32 {v(T[1])}, {s(s_t0)}, {v(T[0])}
    s_xor_b32 {s(s_t1)}, {s(s_w)}, 4
    s_lshl_b32 {s(s_t1)}, {s(s_t1)}, 9
    v_add_u32 {v(T[2])}, {s(s_t1)}, {v(T[0])}
    s_waitcnt vmcnt(0)
    s_barrier
    ds_write_b64 {v(T[1])}, {vr(M[0],2)}
    s_waitcnt lgkmcnt(0)
    s_barrier
    ds_read_b64 {vr(T[4],2)}, {v(T[2])}
    s_waitcnt lgkmcnt(0)
    v_max_f32 {v(M[0])}, {v(M[0])}, {v(T[4])}
    v_max_f32 {v(M[1])}, {v(M[1])}, {v(T[5])}
    s_barrier""")
    g("s_mov_b32 exec_lo, 0")
    for X in range(2):
        g(f"""v_xor_b32 {v(T[0])}, 0x80000000, {v(M[X])}
        v_and_b32 {v(T[1])}, 0xffff0000, {v(T[0])}
        v_sub_f32 {v(T[0])}, {v(T[0])}, {v(T[1])}
        v_and_b32 {v(T[2])}, 0xffff0000, {v(T[0])}
        v_sub_f32 {v(T[0])}, {v(T[0])}, {v(T[2])}
        v_lshrrev_b32 {v(T[1])}, 16, {v(T[1])}
        v_or_b32 {v(Qr[X])}, {v(T[1])}, {v(T[2])}
        v_lshrrev_b32 {v(Qr[X]+1)}, 16, {v(T[0])}""")
    g("s_mov_b32 exec_lo, -1")
    dma_first2()
    g(f"s_branch {L('restart')}")
    g.label(L('att_done'))
    return dict(lds=ATT_LDS)

def gen_att3(g, name="att_kernel", stamps=False, **kw):
    L = lambda x: f"{name}_{x}"
    g.kernel_start(name)
    P = dict(SX=4, SG=8, SWS=12, s_id=2, s_w=18)
    st = None
    if stamps:
        def st(k): g(f"s_memtime s[{60+2*k}:{61+2*k}]\ns_waitcnt lgkmcnt(0)" if k else f"s_memtime s[{60+2*k}:{61+2*k}]")
        st(0)
    g(f"s_cmp_ge_u32 s2, 256\ns_cbranch_scc1 {L('exit')}")
    g.srd(4, "ax"); g.srd(8, "gw"); g.srd(12, "ws")
    g(f"""v_lshrrev_b32 v2, 6, v0
    v_and_b32 v1, 63, v0
    v_readfirstlane_b32 s18, v2
    s_waitcnt lgkmcnt(0)""")
    g.srd_fin(4, "ax"); g.srd_fin(8, "gw"); g.srd_fin(12, "ws")
    info = gen_att_role(g, L, P, stamps=st, **kw)
    if stamps:
        g("s_waitcnt vmcnt(0)"); st(4)
        g(f"""s_mov_b64 exec, 1
        s_lshl_b32 s38, s2, 3
        s_add_u32 s38, s38, s18
        s_lshl_b32 s38, s38, 5
        s_add_u32 s38, s38, {WS_STAMP}
        v_mov_b32 v1, 0""")
        for k in range(5): g(f"v_mov_b32 v{8+k}, s{60+2*k}")
        g("v_mov_b32 v13, s90\nv_mov_b32 v14, s91\nv_mov_b32 v15, s79")
        g("buffer_store_dwordx4 v[8:11], v1, s[12:15], s38 offen\nbuffer_store_dwordx4 v[12:15], v1, s[12:15], s38 offen offset:16")
    g.label(L('exit'))
    g("s_endpgm")
    g.kernel_end(name, 128)
    return info
```

```python
from common2 import *

FIN_EARLY = {}
def gen_fin_role(g, L, P, sc1=False, skip=(), trace=False, loop_prio=None, ld_prio=None, wo_pf=True, early=False, early_only=False, dyn=None, lsplit=None, pre_poll=None, wait_h=None, wait_o=None, stamps=None):
    NS, SLOT = 4, 8192 + 10240
    NCH = 24
    SLF, NSF, NCF = 12288 + 12800, 3, 8
    SW2, SWO, SB2, SOUT, SWS = P["SW2"], P["SWO"], P["SB2"], P["SOUT"], P["SWS"]
    s_id, s_w = P["s_id"], P["s_w"]
    s_mb, s_ct, s_t0, s_t1, s_m0x, s_m0w, s_kx, s_kw, s_kc, s_lw, s_ox = 40, 41, 42, 43, 44, 45, 46, 47, 48, 49, 50
    if early_only: s_mb, s_ct, s_t0, s_t1, s_lw = 88, 89, 90, 91, 92
    v_lane = 1
    g0 = g
    class _G:
        tr = False
        def __call__(self, line=""):
            keep = []
            for l in line.split("\n"):
                ls = l.strip()
                if "dma" in skip and ls.startswith("buffer_load_dwordx4") and ls.endswith("lds"): continue
                if "mfma" in skip and ls.startswith("v_mfma"): continue
                if "reads" in skip and ls.startswith("ds_read"): continue
                if "halfreads" in skip and ls.startswith("ds_read_b64_tr"):
                    self.cnt = getattr(self, "cnt", 0) + 1
                    if self.cnt % 2 == 0: continue
                if "halfreads" in skip and ls.startswith("s_waitcnt lgkmcnt(11)"): l = l.replace("lgkmcnt(11)", "lgkmcnt(6)")
                keep.append(l)
                if self.tr and (ls == "s_barrier" or ls.startswith("s_waitcnt vmcnt")):
                    keep.append("s_memtime s[56:57]\ns_waitcnt lgkmcnt(0)\nv_cmp_eq_u32 vcc, s55, v1\nv_mov_b32 v31, s56\ns_add_u32 s55, s55, 1\nv_cndmask_b32 v30, v30, v31, vcc")
            g0("\n".join(keep))
        def label(self, n): g0.label(n)
        def c(self, t): g0.c(t)
    g = _G()
    t0, t1, t2, t3 = 2, 3, 4, 5
    sfx = " sc1" if sc1 else ""
    g(f"""s_and_b32 {s(s_t0)}, {s(s_id)}, 7
    s_lshr_b32 {s(s_t1)}, {s(s_id)}, 3
    s_lshr_b32 {s(s_mb)}, {s(s_t0)}, 1
    s_lshl_b32 {s(s_mb)}, {s(s_mb)}, 3
    s_and_b32 {s(s_ct)}, {s(s_t1)}, 7
    s_add_u32 {s(s_mb)}, {s(s_mb)}, {s(s_ct)}
    s_and_b32 {s(s_ct)}, {s(s_t0)}, 1
    s_lshl_b32 {s(s_ct)}, {s(s_ct)}, 2
    s_lshr_b32 {s(s_t1)}, {s(s_t1)}, 3
    s_add_u32 {s(s_ct)}, {s(s_ct)}, {s(s_t1)}""")
    E_AX, E_AW, E_FX, E_FW2, E_OFF, E_G, E_B2 = 112, 113, 114, 115, 116, 117, 118
    def compute_setup_early():
        g(f"""s_lshl_b32 {s(s_t0)}, {s(s_mb)}, 6
        s_lshl_b32 {s(s_t1)}, {s(s_w)}, 4
        s_add_u32 {s(s_t0)}, {s(s_t0)}, {s(s_t1)}
        v_and_b32 {v(t0)}, 15, {v(v_lane)}
        v_add_u32 {v(t0)}, {s(s_t0)}, {v(t0)}                  ; token
        v_mul_u32_u24 {v(E_OFF)}, 1280, {v(t0)}
        v_lshlrev_b32 {v(E_G)}, 2, {v(t0)}
        v_lshrrev_b32 {v(t1)}, 4, {v(v_lane)}                  ; q
        v_lshlrev_b32 {v(t2)}, 3, {v(t1)}
        s_mul_i32 {s(s_t0)}, {s(s_ct)}, 160
        v_add_u32 {v(t2)}, {s(s_t0)}, {v(t2)}
        v_add_u32 {v(E_OFF)}, {v(E_OFF)}, {v(t2)}""")
        g(f"v_mov_b32 {v(E_B2)}, {v(t2)}")
        g(f"""v_and_b32 {v(t0)}, 15, {v(v_lane)}
        v_lshrrev_b32 {v(t2)}, 2, {v(t0)}
        v_sub_u32 {v(t2)}, 0, {v(t2)}
        v_and_b32 {v(t2)}, 3, {v(t2)}
        v_xor_b32 {v(t2)}, {v(t2)}, {v(t1)}
        v_lshlrev_b32 {v(t2)}, 4, {v(t2)}
        v_lshl_add_u32 {v(t2)}, {v(t0)}, 6, {v(t2)}
        s_lshl_b32 {s(s_t0)}, {s(s_w)}, 10
        v_add_u32 {v(E_AX)}, {s(s_t0)}, {v(t2)}
        v_lshrrev_b32 {v(t2)}, 1, {v(t1)}
        v_lshlrev_b32 {v(t2)}, 4, {v(t2)}
        v_and_b32 {v(t3)}, 1, {v(t1)}
        v_lshl_add_u32 {v(t2)}, {v(t3)}, 2, {v(t2)}
        v_bfe_u32 {v(t3)}, {v(v_lane)}, 2, 2
        v_add_u32 {v(t2)}, {v(t2)}, {v(t3)}                    ; row
        v_mul_u32_u24 {v(t2)}, 160, {v(t2)}
        v_and_b32 {v(t3)}, 3, {v(v_lane)}
        v_lshl_add_u32 {v(t2)}, {v(t3)}, 3, {v(t2)}
        v_add_u32 {v(E_AW)}, 8192, {v(t2)}
        v_mul_u32_u24 {v(E_FX)}, 3072, {v(t1)}
        v_mul_u32_u24 {v(t0)}, 48, {v(t0)}
        v_add_u32 {v(E_FX)}, {v(E_FX)}, {v(t0)}
        s_mul_i32 {s(s_t0)}, {s(s_w)}, {16*48}
        v_add_u32 {v(E_FX)}, {s(s_t0)}, {v(E_FX)}
        v_bfe_u32 {v(t0)}, {v(v_lane)}, 2, 2
        v_lshl_add_u32 {v(t0)}, {v(t1)}, 2, {v(t0)}
        v_add_u32 {v(t0)}, 64, {v(t0)}
        v_mul_u32_u24 {v(t0)}, 160, {v(t0)}
        v_lshl_add_u32 {v(t0)}, {v(t3)}, 3, {v(t0)}
        v_add_u32 {v(E_FW2)}, 12288, {v(t0)}""")
    def final_loop(tag, tiles, FRb, ACC_, fx, fw, fw2, fxn, fwn, fw2n, loader):
        nt_ = len(tiles)
        BS = 4 + 4*nt_
        def readsF(j, buf, nxt=False):
            b = FRb + BS*buf
            ax_, aw_, aw2_ = (fxn, fwn, fw2n) if nxt else (fx, fw, fw2)
            g(f"ds_read_b128 {vr(b,4)}, {v(ax_)} offset:{j*16}")
            for i, t in enumerate(tiles):
                if j < 2:
                    base = j*32*160 + t*32
                    g(f"ds_read_b64_tr_b16 {vr(b+4+4*i,2)}, {v(aw_)} offset:{base}\nds_read_b64_tr_b16 {vr(b+6+4*i,2)}, {v(aw_)} offset:{base+1280}")
                else:
                    g(f"ds_read_b64_tr_b16 {vr(b+4+4*i,2)}, {v(aw2_)} offset:{t*32}")
        def mfF(buf):
            b = FRb + BS*buf
            for i in range(nt_):
                g(f"v_mfma_f32_16x16x32_bf16 {vr(ACC_+4*i,4)}, {vr(b+4+4*i,4)}, {vr(b,4)}, {vr(ACC_+4*i,4)}")
        n01, n2 = 1 + 2*nt_, 1 + nt_
        g(f"s_mov_b32 s52, 0\ns_mov_b32 s53, 0")
        readsF(0, 0)
        buf = 0
        g.label(L('f3cl' + tag))
        for half in range(2):
            g(f"""s_add_u32 s53, s53, {SLF}
            s_cmp_ge_u32 s53, {NSF*SLF}
            s_cselect_b32 s53, 0, s53
            s_mov_b32 s54, {SLF}
            s_cmov_b32 s54, {-(NSF-1)*SLF}
            v_add_u32 {v(fxn)}, s54, {v(fx)}
            v_add_u32 {v(fwn)}, s54, {v(fw)}
            v_add_u32 {v(fw2n)}, s54, {v(fw2)}""")
            for j in range(3):
                if j == 2:
                    if loader:
                        lb = f"{tag}{half}"
                        g(f"""s_cmp_eq_u32 s52, 0
                        s_cbranch_scc1 {L('w3' + lb)}
                        s_cmp_le_u32 s52, 5
                        s_cbranch_scc1 {L('w7' + lb)}
                        s_waitcnt vmcnt(0)
                        s_branch {L('wd' + lb)}""")
                        g.label(L('w3' + lb)); g(f"s_waitcnt vmcnt(3)\ns_branch {L('wd' + lb)}")
                        g.label(L('w7' + lb)); g("s_waitcnt vmcnt(7)")
                        g.label(L('wd' + lb))
                    g("s_waitcnt lgkmcnt(0)\ns_barrier")
                    if loader:
                        g(f"s_cmp_gt_u32 s52, 4\ns_cbranch_scc1 {L('nd' + lb)}")
                        final_loop.dma()
                        g.label(L('nd' + lb))
                        g(f"""s_add_u32 s55, s55, {SLF}
                        s_cmp_ge_u32 s55, {NSF*SLF}
                        s_cselect_b32 s55, 0, s55""")
                if j < 2: readsF(j + 1, buf ^ 1)
                else: readsF(0, buf ^ 1, nxt=True)
                g(f"s_waitcnt lgkmcnt({n2 if j == 1 else n01})")
                mfF(buf)
                buf ^= 1
            g(f"v_mov_b32 {v(fx)}, {v(fxn)}\nv_mov_b32 {v(fw)}, {v(fwn)}\nv_mov_b32 {v(fw2)}, {v(fw2n)}\ns_add_u32 s52, s52, 1")
        g(f"s_cmp_lt_u32 s52, 8\ns_cbranch_scc1 {L('f3cl' + tag)}")
        g("s_waitcnt lgkmcnt(0)")
    def final_addr(fx, fw, fw2, s_wave):
        g(f"""v_and_b32 {v(t0)}, 15, {v(v_lane)}
        v_lshrrev_b32 {v(t1)}, 4, {v(v_lane)}                  ; q
        v_lshrrev_b32 {v(t2)}, 1, {v(t1)}
        v_lshlrev_b32 {v(t2)}, 4, {v(t2)}
        v_and_b32 {v(t3)}, 1, {v(t1)}
        v_lshl_add_u32 {v(t2)}, {v(t3)}, 2, {v(t2)}
        v_bfe_u32 {v(t3)}, {v(v_lane)}, 2, 2
        v_add_u32 {v(t2)}, {v(t2)}, {v(t3)}
        v_mul_u32_u24 {v(t2)}, 160, {v(t2)}
        v_and_b32 {v(t3)}, 3, {v(v_lane)}
        v_lshl_add_u32 {v(t2)}, {v(t3)}, 3, {v(t2)}
        v_add_u32 {v(fw)}, 12288, {v(t2)}
        v_mul_u32_u24 {v(fx)}, 3072, {v(t1)}
        v_mul_u32_u24 {v(t0)}, 48, {v(t0)}
        v_add_u32 {v(fx)}, {v(fx)}, {v(t0)}
        s_mul_i32 {s(s_t0)}, {s(s_wave)}, {16*48}
        v_add_u32 {v(fx)}, {s(s_t0)}, {v(fx)}
        v_bfe_u32 {v(t0)}, {v(v_lane)}, 2, 2
        v_lshl_add_u32 {v(t0)}, {v(t1)}, 2, {v(t0)}
        v_add_u32 {v(t0)}, 64, {v(t0)}
        v_mul_u32_u24 {v(t0)}, 160, {v(t0)}
        v_lshl_add_u32 {v(t0)}, {v(t3)}, 3, {v(t0)}
        v_add_u32 {v(fw2)}, 12288, {v(t0)}""")
    dx = 40; dw = [41, 42, 43]; dwo = [44, 45, 46, 47]; dxo = 48
    def loader_setup():
        g(f"""s_sub_u32 {s(s_lw)}, {s(s_w)}, 4
        v_lshrrev_b32 {v(t0)}, 2, {v(v_lane)}
        v_lshrrev_b32 {v(t1)}, 4, {v(v_lane)}
        v_sub_u32 {v(t1)}, 0, {v(t1)}
        v_and_b32 {v(t1)}, 3, {v(t1)}
        v_and_b32 {v(t2)}, 3, {v(v_lane)}
        v_xor_b32 {v(t2)}, {v(t2)}, {v(t1)}
        s_lshl_b32 {s(s_t0)}, {s(s_mb)}, 6
        s_and_b32 {s(s_t1)}, {s(s_lw)}, 1
        s_lshl_b32 {s(s_t1)}, {s(s_t1)}, 5
        s_add_u32 {s(s_t0)}, {s(s_t0)}, {s(s_t1)}
        v_add_u32 {v(t0)}, {s(s_t0)}, {v(t0)}                  ; row
        v_lshlrev_b32 {v(t0)}, 6, {v(t0)}
        v_lshl_add_u32 {v(dx)}, {v(t2)}, 4, {v(t0)}
        s_lshr_b32 {s(s_t0)}, {s(s_lw)}, 1
        s_lshl_b32 {s(s_t0)}, {s(s_t0)}, 17
        v_add_u32 {v(dx)}, {s(s_t0)}, {v(dx)}
        s_mul_i32 {s(s_t0)}, {s(s_lw)}, 160""")
        for j in range(3):
            g(f"""v_add_u32 {v(t0)}, {s(s_t0)}, {v(v_lane)}
            v_add_u32 {v(t0)}, {64*j}, {v(t0)}
            v_mul_u32_u24 {v(t1)}, 6554, {v(t0)}
            v_lshrrev_b32 {v(t1)}, 16, {v(t1)}                ; rho = P/10
            v_mul_u32_u24 {v(t2)}, 10, {v(t1)}
            v_sub_u32 {v(t2)}, {v(t0)}, {v(t2)}               ; cp
            v_and_b32 {v(t0)}, 0x33, {v(t1)}
            v_and_b32 {v(t3)}, 4, {v(t1)}
            v_lshl_or_b32 {v(t0)}, {v(t3)}, 1, {v(t0)}
            v_and_b32 {v(t3)}, 8, {v(t1)}
            v_lshrrev_b32 {v(t3)}, 1, {v(t3)}
            v_or_b32 {v(t0)}, {v(t0)}, {v(t3)}                ; k
            v_mul_u32_u24 {v(t1)}, 1280, {v(t0)}
            v_lshl_add_u32 {v(dw[j])}, {v(t2)}, 4, {v(t1)}
            s_mul_i32 {s(s_t1)}, {s(s_ct)}, 160
            s_sub_u32 {s(s_t1)}, {s(s_t1)}, {1024*j}
            v_add_u32 {v(dw[j])}, {s(s_t1)}, {v(dw[j])}""")
        g(f"s_mul_i32 {s(s_t0)}, {s(s_lw)}, 200")
        for j in range(4):
            g(f"""v_add_u32 {v(t0)}, {s(s_t0)}, {v(v_lane)}
            v_add_u32 {v(t0)}, {64*j}, {v(t0)}
            v_mul_u32_u24 {v(t1)}, 6554, {v(t0)}
            v_lshrrev_b32 {v(t1)}, 16, {v(t1)}                ; rho'
            v_mul_u32_u24 {v(t2)}, 10, {v(t1)}
            v_sub_u32 {v(t2)}, {v(t0)}, {v(t2)}               ; cp
            v_bfe_u32 {v(t0)}, {v(t1)}, 4, 1
            v_bfe_u32 {v(t3)}, {v(t1)}, 2, 1
            v_lshl_add_u32 {v(t0)}, {v(t0)}, 1, {v(t3)}       ; q
            v_mul_u32_u24 {v(t0)}, 20, {v(t0)}
            v_bfe_u32 {v(t3)}, {v(t1)}, 3, 1
            v_lshl_add_u32 {v(t0)}, {v(t3)}, 2, {v(t0)}
            v_and_b32 {v(t3)}, 3, {v(t1)}
            v_add_u32 {v(t0)}, {v(t0)}, {v(t3)}
            v_bfe_u32 {v(t3)}, {v(t1)}, 5, 1
            v_lshl_add_u32 {v(t0)}, {v(t3)}, 3, {v(t0)}       ; + 8j
            v_bfe_u32 {v(t3)}, {v(t1)}, 2, 2
            v_mul_u32_u24 {v(t3)}, 20, {v(t3)}
            v_and_b32 {v(dwo[j])}, 3, {v(t1)}
            v_add_u32 {v(t3)}, {v(t3)}, {v(dwo[j])}
            v_add_u32 {v(t3)}, 16, {v(t3)}
            v_cmp_le_u32 vcc, 64, {v(t1)}
            s_nop 1
            v_cndmask_b32 {v(t0)}, {v(t0)}, {v(t3)}, vcc
            v_mul_u32_u24 {v(t1)}, 1280, {v(t0)}
            v_lshl_add_u32 {v(dwo[j])}, {v(t2)}, 4, {v(t1)}
            s_mul_i32 {s(s_t1)}, {s(s_ct)}, 160
            s_sub_u32 {s(s_t1)}, {s(s_t1)}, {1024*j}
            v_add_u32 {v(dwo[j])}, {s(s_t1)}, {v(dwo[j])}""")
        g(f"v_lshlrev_b32 {v(dxo)}, 4, {v(v_lane)}")
    if early_only == "loader":
        loader_setup(); return None
    if early_only == "compute":
        compute_setup_early(); return None
    g(f"s_cmp_lt_u32 {s(s_w)}, 4\ns_cbranch_scc1 {L('f2c')}")
    if not early: loader_setup()
    else: g(f"s_sub_u32 {s(s_lw)}, {s(s_w)}, 4")
    early = (early is True)
    g(f"""s_lshl_b32 {s(s_m0x)}, {s(s_lw)}, 11
    s_mul_i32 {s(s_m0w)}, {s(s_lw)}, 2560
    s_add_u32 {s(s_m0w)}, {s(s_m0w)}, 8192
    s_add_u32 {s(s_kc)}, {s(s_mb)}, {s(s_ct)}
    s_mul_i32 {s(s_kc)}, {s(s_kc)}, 3
    s_cmp_ge_u32 {s(s_kc)}, 96
    s_cselect_b32 {s(s_t0)}, 96, 0
    s_sub_u32 {s(s_kc)}, {s(s_kc)}, {s(s_t0)}
    s_cmp_ge_u32 {s(s_kc)}, 48
    s_cselect_b32 {s(s_t0)}, 48, 0
    s_sub_u32 {s(s_kc)}, {s(s_kc)}, {s(s_t0)}
    s_cmp_ge_u32 {s(s_kc)}, 24
    s_cselect_b32 {s(s_t0)}, 24, 0
    s_sub_u32 {s(s_kc)}, {s(s_kc)}, {s(s_t0)}""")
    if wait_h: wait_h(s_mb, loader=True)
    def dma(c):
        slot = c % NS
        g(f"""s_add_u32 m0, {s(s_m0x)}, {slot*SLOT}
        s_lshl_b32 {s(s_kx)}, {s(s_kc)}, 18
        s_add_u32 {s(s_kx)}, {s(s_kx)}, {WS_H2}
        s_mul_i32 {s(s_kw)}, {s(s_kc)}, {64*1280}
        buffer_load_dwordx4 {v(dx)}, {sr(SWS,4)}, {s(s_kx)} offen{sfx} lds
        buffer_load_dwordx4 {v(dx)}, {sr(SWS,4)}, {s(s_kx)} offen offset:1024{sfx} lds
        s_add_u32 m0, {s(s_m0w)}, {slot*SLOT}
        s_add_u32 {s(s_kc)}, {s(s_kc)}, 1
        buffer_load_dwordx4 {v(dw[0])}, {sr(SW2,4)}, {s(s_kw)} offen lds
        buffer_load_dwordx4 {v(dw[1])}, {sr(SW2,4)}, {s(s_kw)} offen offset:1024 lds
        s_mov_b32 exec_hi, 0
        buffer_load_dwordx4 {v(dw[2])}, {sr(SW2,4)}, {s(s_kw)} offen offset:2048 lds
        s_mov_b32 exec_hi, -1
        s_cmp_eq_u32 {s(s_kc)}, {NCH}
        s_cselect_b32 {s(s_kc)}, 0, {s(s_kc)}""")
    if trace:
        g("s_mov_b32 s55, 0\nv_mov_b32 v30, 0"); g.tr = True
    dma(0); dma(1)
    if ld_prio is not None: g(f"s_setprio {ld_prio}")
    g("s_waitcnt vmcnt(5)\ns_barrier")
    dma(2)
    g("s_mov_b32 s52, 5")
    g.label(L('f2ll'))
    for c in range(4):
        g("s_waitcnt vmcnt(5)\ns_barrier")
        dma(c + 3)
    g(f"s_sub_u32 s52, s52, 1\ns_cmp_lg_u32 s52, 0\ns_cbranch_scc1 {L('f2ll')}")
    g("s_waitcnt vmcnt(5)\ns_barrier")
    dma(23)
    g("s_waitcnt vmcnt(5)\ns_barrier")
    g("s_waitcnt vmcnt(0)\ns_barrier")
    g("s_barrier")
    if ld_prio is not None: g("s_setprio 3")
    if trace:
        g.tr = False
        g(f"""s_lshl_b32 s54, {s(s_id)}, 2
        s_add_u32 s54, s54, {s(s_lw)}
        s_lshl_b32 s54, s54, 8
        s_add_u32 s54, s54, {WS_STAMP + 3145728}
        v_lshlrev_b32 v31, 2, v1
        buffer_store_dword v30, v31, {sr(SWS,4)}, s54 offen""")
    g("s_barrier")
    g(f"""s_add_u32 {s(s_kc)}, {s(s_mb)}, {s(s_ct)}
    s_and_b32 {s(s_kc)}, {s(s_kc)}, 7
    s_mul_i32 {s(s_m0x)}, {s(s_lw)}, 3072
    s_mul_i32 {s(s_m0w)}, {s(s_lw)}, 3200
    s_add_u32 {s(s_m0w)}, {s(s_m0w)}, 12288
    s_mul_i32 {s(s_ox)}, {s(s_lw)}, {O_HS}
    s_mul_i32 {s(s_t0)}, {s(s_mb)}, 3072
    s_add_u32 {s(s_ox)}, {s(s_ox)}, {s(s_t0)}
    s_add_u32 {s(s_ox)}, {s(s_ox)}, {WS_O2}""")
    def kadd(n):
        g(f"s_add_u32 {s(s_t0)}, {s(s_kc)}, {n}\ns_and_b32 {s(s_t0)}, {s(s_t0)}, 7")
    def dma_w(c):
        slot = c % NSF
        kadd(c)
        g(f"""s_add_u32 m0, {s(s_m0w)}, {slot*SLF}
        s_mul_i32 {s(s_kw)}, {s(s_t0)}, {80*1280}""")
        for j in range(3): g(f"buffer_load_dwordx4 {v(dwo[j])}, {sr(SWO,4)}, {s(s_kw)} offen offset:{1024*j} lds")
        g(f"""s_mov_b64 exec, 0xff
        buffer_load_dwordx4 {v(dwo[3])}, {sr(SWO,4)}, {s(s_kw)} offen offset:3072 lds
        s_mov_b64 exec, -1""")
    def dma_x(c):
        slot = c % NSF
        kadd(c)
        g(f"""s_add_u32 m0, {s(s_m0x)}, {slot*SLF}
        s_mul_i32 {s(s_kx)}, {s(s_t0)}, {4*O_HS}
        s_add_u32 {s(s_kx)}, {s(s_kx)}, {s(s_ox)}""")
        for j in range(3): g(f"buffer_load_dwordx4 {v(dxo)}, {sr(SWS,4)}, {s(s_kx)} offen offset:{1024*j}{sfx} lds")
    ORD = NSF * SLF
    if dyn is None:
        for c in range(3): dma_w(c)
    if wo_pf or dyn is not None:
        for c in range(0 if dyn is not None else 3, NCF):
            kadd(c)
            g(f"s_mul_i32 {s(s_kw)}, {s(s_t0)}, {80*1280}")
            for j in range(3): g(f"buffer_load_dword v20, {v(dwo[j])}, {sr(SWO,4)}, {s(s_kw)} offen offset:{1024*j}")
            g(f"""s_mov_b64 exec, 0xff
            buffer_load_dword v20, {v(dwo[3])}, {sr(SWO,4)}, {s(s_kw)} offen offset:3072
            s_mov_b64 exec, -1""")
    if dyn is None and lsplit:
        def dma_wx_dyn():
            g(f"""s_add_u32 {s(s_t0)}, {s(s_kc)}, s52
            s_add_u32 {s(s_t0)}, {s(s_t0)}, 3
            s_and_b32 {s(s_t0)}, {s(s_t0)}, 7
            s_add_u32 m0, {s(s_m0w)}, s55
            s_mul_i32 {s(s_kw)}, {s(s_t0)}, {80*1280}""")
            for j in range(3): g(f"buffer_load_dwordx4 {v(dwo[j])}, {sr(SWO,4)}, {s(s_kw)} offen offset:{1024*j} lds")
            g(f"""s_mov_b64 exec, 0xff
            buffer_load_dwordx4 {v(dwo[3])}, {sr(SWO,4)}, {s(s_kw)} offen offset:3072 lds
            s_mov_b64 exec, -1
            s_add_u32 m0, {s(s_m0x)}, s55
            s_mul_i32 {s(s_kx)}, {s(s_t0)}, {4*O_HS}
            s_add_u32 {s(s_kx)}, {s(s_kx)}, {s(s_ox)}""")
            for j in range(3): g(f"buffer_load_dwordx4 {v(dxo)}, {sr(SWS,4)}, {s(s_kx)} offen offset:{1024*j}{sfx} lds")
        final_loop.dma = dma_wx_dyn
        lfx, lfw, lfw2, lfxn, lfwn, lfw2n = 120, 121, 122, 123, 124, 125
        LACC = 92
        final_addr(lfx, lfw, lfw2, s_lw)
        for i in range(4*len(lsplit)): g(f"v_mov_b32 {v(LACC+i)}, 0")
        g("s_mov_b32 s55, 0")
        if wait_o: wait_o(s_mb, loader=True)
        for c in range(3): dma_x(c)
        g("s_waitcnt vmcnt(6)\ns_barrier")
        final_loop("b", lsplit, 56, LACC, lfx, lfw, lfw2, lfxn, lfwn, lfw2n, True)
        g(f"""s_lshl_b32 {s(s_t0)}, {s(s_lw)}, 11
        v_lshlrev_b32 {v(t0)}, 4, {v(v_lane)}
        v_add_u32 {v(t0)}, {s(s_t0)}, {v(t0)}
        s_nop 7""")
        for i in range(len(lsplit)): g(f"ds_write_b128 {v(t0)}, {vr(LACC+4*i,4)} offset:{1024*i}")
        g("s_waitcnt lgkmcnt(0)\ns_barrier")
    elif dyn is None:
        if wait_o: wait_o(s_mb, loader=True)
        for c in range(3): dma_x(c)
        g("s_waitcnt vmcnt(6)\ns_barrier")
        for c in range(NCF - 1):
            y = 3 if c == 0 else (7 if c + 2 <= NCF - 1 else 0)
            g(f"s_waitcnt vmcnt({y})\ns_barrier")
            if c + 3 <= NCF - 1:
                dma_w(c + 3); dma_x(c + 3)
        g("s_barrier")
    else:
        def dma_dyn(k):
            slot = k % NSF
            g(f"""ds_read_b32 v21, v22 offset:{4*k}
            s_waitcnt lgkmcnt(0)
            v_readfirstlane_b32 {s(s_t0)}, v21
            s_add_u32 m0, {s(s_m0w)}, {slot*SLF}
            s_nop 1
            s_mul_i32 {s(s_kw)}, {s(s_t0)}, {20*1280}""")
            for j in range(3): g(f"buffer_load_dwordx4 {v(dwo[j])}, {sr(SWO,4)}, {s(s_kw)} offen offset:{1024*j} lds")
            g(f"""s_mov_b64 exec, 0xff
            buffer_load_dwordx4 {v(dwo[3])}, {sr(SWO,4)}, {s(s_kw)} offen offset:3072 lds
            s_mov_b64 exec, -1
            s_add_u32 m0, {s(s_m0x)}, {slot*SLF}
            s_mul_i32 {s(s_kx)}, {s(s_t0)}, {O_HS}
            s_add_u32 {s(s_kx)}, {s(s_kx)}, {s(s_ox)}""")
            for j in range(3): g(f"buffer_load_dwordx4 {v(dxo)}, {sr(SWS,4)}, {s(s_kx)} offen offset:{1024*j}{sfx} lds")
        g(f"v_mov_b32 v22, {ORD}\ns_waitcnt vmcnt(0)\ns_barrier")
        for k in range(3): dma_dyn(k)
        g("s_waitcnt vmcnt(14)\ns_barrier")
        for c in range(NCF - 1):
            y = 7 if c + 2 <= NCF - 1 else 0
            g(f"s_waitcnt vmcnt({y})\ns_barrier")
            if c + 3 <= NCF - 1: dma_dyn(c + 3)
        g("s_barrier")
    g(f"s_branch {L('f2done')}")
    g.label(L('f2c'))
    ax = [6, 7]; axh = [8, 9]; aw, awh = 10, 11
    v_g = 12; v_off = 13; v_b2 = 14
    FR = 24
    ACCB, ACCA = 72, 92
    PK = 112
    fx, fw, fw2 = 120, 121, 122
    if early:
        g(f"""v_mov_b32 {v(ax[0])}, {v(E_AX)}
        v_add_u32 {v(axh[0])}, {2*SLOT}, {v(E_AX)}
        v_mov_b32 {v(aw)}, {v(E_AW)}
        v_add_u32 {v(awh)}, {2*SLOT}, {v(E_AW)}
        v_add_u32 {v(fw)}, 4096, {v(E_AW)}
        v_mov_b32 {v(fx)}, {v(E_FX)}
        v_mov_b32 {v(fw2)}, {v(E_FW2)}
        v_mov_b32 {v(v_off)}, {v(E_OFF)}
        v_mov_b32 {v(v_g)}, {v(E_G)}""")
        for t in range(5): g(f"buffer_load_dwordx2 {vr(v_b2+2*t,2)}, {v(E_B2)}, {sr(SB2,4)}, 0 offen offset:{t*32}")
    else:
        g(f"""s_lshl_b32 {s(s_t0)}, {s(s_mb)}, 6
        s_lshl_b32 {s(s_t1)}, {s(s_w)}, 4
        s_add_u32 {s(s_t0)}, {s(s_t0)}, {s(s_t1)}
        v_and_b32 {v(t0)}, 15, {v(v_lane)}
        v_add_u32 {v(t0)}, {s(s_t0)}, {v(t0)}                  ; token
        v_mul_u32_u24 {v(v_off)}, 1280, {v(t0)}
        v_lshlrev_b32 {v(v_g)}, 2, {v(t0)}
        v_lshrrev_b32 {v(t1)}, 4, {v(v_lane)}                  ; q
        v_lshlrev_b32 {v(t2)}, 3, {v(t1)}
        s_mul_i32 {s(s_t0)}, {s(s_ct)}, 160
        v_add_u32 {v(t2)}, {s(s_t0)}, {v(t2)}
        v_add_u32 {v(v_off)}, {v(v_off)}, {v(t2)}""")
        for t in range(5): g(f"buffer_load_dwordx2 {vr(v_b2+2*t,2)}, {v(t2)}, {sr(SB2,4)}, 0 offen offset:{t*32}")
        g(f"""v_and_b32 {v(t0)}, 15, {v(v_lane)}
        v_lshrrev_b32 {v(t2)}, 2, {v(t0)}
        v_sub_u32 {v(t2)}, 0, {v(t2)}
        v_and_b32 {v(t2)}, 3, {v(t2)}
        v_xor_b32 {v(t2)}, {v(t2)}, {v(t1)}
        v_lshlrev_b32 {v(t2)}, 4, {v(t2)}
        v_lshl_add_u32 {v(t2)}, {v(t0)}, 6, {v(t2)}
        s_lshl_b32 {s(s_t0)}, {s(s_w)}, 10
        v_add_u32 {v(ax[0])}, {s(s_t0)}, {v(t2)}
        v_add_u32 {v(axh[0])}, {2*SLOT}, {v(ax[0])}
        v_lshrrev_b32 {v(t2)}, 1, {v(t1)}
        v_lshlrev_b32 {v(t2)}, 4, {v(t2)}
        v_and_b32 {v(t3)}, 1, {v(t1)}
        v_lshl_add_u32 {v(t2)}, {v(t3)}, 2, {v(t2)}
        v_bfe_u32 {v(t3)}, {v(v_lane)}, 2, 2
        v_add_u32 {v(t2)}, {v(t2)}, {v(t3)}                    ; row
        v_mul_u32_u24 {v(t2)}, 160, {v(t2)}
        v_and_b32 {v(t3)}, 3, {v(v_lane)}
        v_lshl_add_u32 {v(t2)}, {v(t3)}, 3, {v(t2)}
        v_add_u32 {v(aw)}, 8192, {v(t2)}
        v_add_u32 {v(awh)}, {2*SLOT}, {v(aw)}
        v_add_u32 {v(fw)}, 12288, {v(t2)}
        v_mul_u32_u24 {v(fx)}, 3072, {v(t1)}
        v_mul_u32_u24 {v(t0)}, 48, {v(t0)}
        v_add_u32 {v(fx)}, {v(fx)}, {v(t0)}
        s_mul_i32 {s(s_t0)}, {s(s_w)}, {16*48}
        v_add_u32 {v(fx)}, {s(s_t0)}, {v(fx)}
        v_bfe_u32 {v(t0)}, {v(v_lane)}, 2, 2
        v_lshl_add_u32 {v(t0)}, {v(t1)}, 2, {v(t0)}
        v_add_u32 {v(t0)}, 64, {v(t0)}
        v_mul_u32_u24 {v(t0)}, 160, {v(t0)}
        v_lshl_add_u32 {v(t0)}, {v(t3)}, 3, {v(t0)}
        v_add_u32 {v(fw2)}, 12288, {v(t0)}""")
    if wait_h: wait_h(s_mb, loader=False)
    g(f"s_mov_b32 {s(s_t0)}, {WS_G2}\nbuffer_load_dword {v(v_g)}, {v(v_g)}, {sr(SWS,4)}, {s(s_t0)} offen{sfx}")
    def reads(c, st, buf):
        slot = c % NS; hi = slot >= 2; so = (slot % 2) * SLOT
        b = FR + 24*buf
        g(f"ds_read_b128 {vr(b,4)}, {v(axh[0] if hi else ax[0])} offset:{so + st*4096}")
        a = awh if hi else aw
        for t in range(5):
            base = so + st*32*160 + t*32
            g(f"ds_read_b64_tr_b16 {vr(b+4+4*t,2)}, {v(a)} offset:{base}\nds_read_b64_tr_b16 {vr(b+6+4*t,2)}, {v(a)} offset:{base+1280}")
    def mf(acc, buf, first):
        b = FR + 24*buf
        for t in range(5):
            g(f"v_mfma_f32_16x16x32_bf16 {vr(acc+4*t,4)}, {vr(b+4+4*t,4)}, {vr(b,4)}, {'0' if first else vr(acc+4*t,4)}")
    for i in range(40): g(f"v_mov_b32 {v(ACCB+i)}, 0")
    g("s_mov_b32 s52, 6")
    g("s_barrier")
    if loop_prio is not None: g(f"s_setprio {loop_prio}")
    if stamps: stamps(1)
    reads(0, 0, 0)
    buf = 0
    g.label(L('f2cl'))
    for c in range(4):
        for st in range(2):
            if st == 1: g("s_barrier")
            nc, ns_ = (c, 1) if st == 0 else (c + 1, 0)
            reads(nc, ns_, buf ^ 1)
            g("s_waitcnt lgkmcnt(11)")
            mf(ACCB, buf, False)
            buf ^= 1
    g(f"s_sub_u32 s52, s52, 1\ns_cmp_lg_u32 s52, 0\ns_cbranch_scc1 {L('f2cl')}")
    g("s_waitcnt lgkmcnt(0)")
    if loop_prio is not None: g("s_setprio 3")
    if pre_poll and dyn is None: pre_poll(s_mb)
    if stamps: stamps(2)
    g("s_barrier")
    def premix():
        g(f"s_waitcnt vmcnt(0)\nv_sub_f32 {v(t3)}, 1.0, {v(v_g)}\ns_nop 7")
        for t in range(5):
            for q in range(4):
                src = v_b2 + 2*t + q // 2
                if q % 2 == 0: g(f"v_lshlrev_b32 {v(t2)}, 16, {v(src)}")
                else: g(f"v_and_b32 {v(t2)}, 0xffff0000, {v(src)}")
                rb = ACCB + 4*t + q
                g(f"v_add_f32 {v(rb)}, {v(rb)}, {v(t2)}\nv_mul_f32 {v(rb)}, {v(rb)}, {v(t3)}")
    if not (pre_poll and dyn is None): premix()
    if dyn is None:
        if wait_o: wait_o(s_mb, loader=False)
        if pre_poll: premix()
    else:
        g(f"s_cmp_lg_u32 {s(s_w)}, 0\ns_cbranch_scc1 {L('np0')}")
        dyn["init"](s_mb, NSF * SLF)
        for k in range(3):
            dyn["issue"](); dyn["finish"](f"i{k}")
        g("s_waitcnt lgkmcnt(0)")
        g.label(L('np0'))
        g("s_barrier")
        dyn["after"]()
    if lsplit:
        ctiles = [t for t in range(5) if t not in lsplit]
        g("s_barrier")
        if stamps: stamps(3)
        final_loop("a", ctiles, FR, ACCA, fx, fw, fw2, 123, 124, 125, False)
        if stamps: stamps(5)
        g(f"""s_lshl_b32 {s(s_t0)}, {s(s_w)}, 11
        v_lshlrev_b32 {v(t0)}, 4, {v(v_lane)}
        v_add_u32 {v(t0)}, {s(s_t0)}, {v(t0)}
        s_barrier""")
        for i, t in enumerate(lsplit): g(f"ds_read_b128 {vr(ACCA+4*t,4)}, {v(t0)} offset:{1024*i}")
        for t in range(5):
            if t == lsplit[0]: g("s_waitcnt lgkmcnt(0)")
            for q in range(4):
                g(f"v_fma_f32 {v(ACCB+4*t+q)}, {v(ACCA+4*t+q)}, {v(v_g)}, {v(ACCB+4*t+q)}")
            p = PK + 2*(t % 4)
            g(f"""v_cvt_pk_bf16_f32 {v(p)}, {v(ACCB+4*t)}, {v(ACCB+4*t+1)}
            v_cvt_pk_bf16_f32 {v(p+1)}, {v(ACCB+4*t+2)}, {v(ACCB+4*t+3)}
            buffer_store_dwordx2 {vr(p,2)}, {v(v_off)}, {sr(SOUT,4)}, 0 offen offset:{t*32}""")
    else:
        fxn, fwn, fw2n = 123, 124, 125
        def readsF(j, buf, nxt=False):
            b = FR + 24*buf
            ax_, aw_, aw2_ = (fxn, fwn, fw2n) if nxt else (fx, fw, fw2)
            g(f"ds_read_b128 {vr(b,4)}, {v(ax_)} offset:{j*16}")
            for t in range(5):
                if j < 2:
                    base = j*32*160 + t*32
                    g(f"ds_read_b64_tr_b16 {vr(b+4+4*t,2)}, {v(aw_)} offset:{base}\nds_read_b64_tr_b16 {vr(b+6+4*t,2)}, {v(aw_)} offset:{base+1280}")
                else:
                    base = t*32
                    g(f"ds_read_b64_tr_b16 {vr(b+4+4*t,2)}, {v(aw2_)} offset:{base}")
        g("s_barrier")
        if stamps: stamps(3)
        g(f"s_mov_b32 s52, 4\ns_mov_b32 s53, 0")
        readsF(0, 0)
        buf = 0
        g.label(L('f3cl'))
        for half in range(2):
            g(f"""s_add_u32 s53, s53, {SLF}
            s_cmp_ge_u32 s53, {NSF*SLF}
            s_cselect_b32 s53, 0, s53
            s_mov_b32 s54, {SLF}
            s_cmov_b32 s54, {-(NSF-1)*SLF}
            v_add_u32 {v(fxn)}, s54, {v(fx)}
            v_add_u32 {v(fwn)}, s54, {v(fw)}
            v_add_u32 {v(fw2n)}, s54, {v(fw2)}""")
            for j in range(3):
                if dyn is not None and j == 0:
                    g(f"s_cmp_lg_u32 {s(s_w)}, 0\ns_cbranch_scc1 {L('ni' + str(half))}\ns_cmp_ge_u32 s89, 8\ns_cbranch_scc1 {L('ni' + str(half))}")
                    dyn["issue"]()
                    g.label(L('ni' + str(half)))
                if dyn is not None and j == 2:
                    g(f"s_cmp_lg_u32 {s(s_w)}, 0\ns_cbranch_scc1 {L('nf' + str(half))}\ns_cmp_ge_u32 s89, 8\ns_cbranch_scc1 {L('nf' + str(half))}")
                    dyn["finish"](f"l{half}")
                    g.label(L('nf' + str(half)))
                if j == 2: g("s_waitcnt lgkmcnt(0)\ns_barrier")
                if j < 2: readsF(j + 1, buf ^ 1)
                else: readsF(0, buf ^ 1, nxt=True)
                g(f"s_waitcnt lgkmcnt({6 if j == 1 else 11})")
                mf(ACCA, buf, False)
                buf ^= 1
            g(f"v_mov_b32 {v(fx)}, {v(fxn)}\nv_mov_b32 {v(fw)}, {v(fwn)}\nv_mov_b32 {v(fw2)}, {v(fw2n)}")
        g(f"s_sub_u32 s52, s52, 1\ns_cmp_lg_u32 s52, 0\ns_cbranch_scc1 {L('f3cl')}")
        g("s_waitcnt lgkmcnt(0)")
        if stamps: stamps(5)
        g("s_nop 7")
        for t in range(5):
            for q in range(4):
                g(f"v_fma_f32 {v(ACCB+4*t+q)}, {v(ACCA+4*t+q)}, {v(v_g)}, {v(ACCB+4*t+q)}")
            p = PK + 2*(t % 4)
            g(f"""v_cvt_pk_bf16_f32 {v(p)}, {v(ACCB+4*t)}, {v(ACCB+4*t+1)}
            v_cvt_pk_bf16_f32 {v(p+1)}, {v(ACCB+4*t+2)}, {v(ACCB+4*t+3)}
            buffer_store_dwordx2 {vr(p,2)}, {v(v_off)}, {sr(SOUT,4)}, 0 offen offset:{t*32}""")
    g.label(L('f2done'))
    return dict(lds=max(NS*SLOT, NSF*SLF) + (64 if dyn is not None else 0))

def gen_fin3(g, name="fin_kernel", stamps=False, **kw):
    L = lambda x: f"{name}_{x}"
    g.kernel_start(name)
    P = dict(SW2=4, SWO=8, SWS=12, SOUT=20, SB2=24, s_id=2, s_w=18)
    st = None
    if stamps:
        def st(k):
            if k == 5: return
            g(f"s_memtime s[{60+2*k}:{61+2*k}]\ns_waitcnt lgkmcnt(0)" if k in (2,3,4) else f"s_memtime s[{60+2*k}:{61+2*k}]")
        st(0)
    g(f"s_cmp_ge_u32 s2, 256\ns_cbranch_scc1 {L('exit')}")
    for r, k in ((4, "w2"), (8, "wo"), (12, "ws"), (20, "out"), (24, "b2")): g.srd(r, k)
    g(f"""v_lshrrev_b32 v2, 6, v0
    v_and_b32 v1, 63, v0
    v_readfirstlane_b32 s18, v2
    s_waitcnt lgkmcnt(0)""")
    for r, k in ((4, "w2"), (8, "wo"), (12, "ws"), (20, "out"), (24, "b2")): g.srd_fin(r, k)
    info = gen_fin_role(g, L, P, stamps=st, **kw)
    if stamps:
        g("s_waitcnt vmcnt(0)"); st(4)
        g(f"""s_mov_b64 exec, 1
        s_lshl_b32 s38, s2, 3
        s_add_u32 s38, s38, s18
        s_lshl_b32 s38, s38, 5
        s_add_u32 s38, s38, {WS_STAMP}
        v_mov_b32 v1, 0""")
        for k in range(5): g(f"v_mov_b32 v{8+k}, s{60+2*k}")
        g("buffer_store_dwordx4 v[8:11], v1, s[12:15], s38 offen\nbuffer_store_dwordx4 v[12:15], v1, s[12:15], s38 offen offset:16")
    g.label(L('exit'))
    g("s_endpgm")
    g.kernel_end(name, 128)
    return info
```

```python
from common2 import *

def gen_qkv5_role(g, L, P, sc1=True, early=None, loads_done=None, ready=None, pretouch=True, stag=(20,1)):
    NCH, NS, SLOT = 20, 5, 16384
    SX, SW, SWS = P["SX"], P["SWQKV"], P["SWS"]
    s_id, s_w = P["s_id"], P["s_w"]
    s_mt, s_nt = P["s_mt"], P["s_nt"]
    s_t0, s_t1, s_m0x, s_m0w, s_kx, s_kw, s_kc, s_lw, s_scale, s_base, s_sl, s_it, s_dl = 42, 43, 44, 45, 46, 47, 48, 49, 50, 51, 52, 53, 54
    v_lane = 1
    t0, t1, t2, t3 = 2, 3, 4, 5
    sfx = " sc1" if sc1 else ""
    g(f"s_cmp_lt_u32 {s(s_w)}, 4\ns_cbranch_scc1 {L('c')}")
    dx = [6, 7]; dw = [8, 9]
    g(f"""s_sub_u32 {s(s_lw)}, {s(s_w)}, 4
    v_lshrrev_b32 {v(t0)}, 2, {v(v_lane)}
    v_lshrrev_b32 {v(t1)}, 4, {v(v_lane)}
    v_sub_u32 {v(t2)}, 0, {v(t1)}
    v_and_b32 {v(t2)}, 3, {v(t2)}
    v_and_b32 {v(t3)}, 3, {v(v_lane)}
    v_xor_b32 {v(t2)}, {v(t2)}, {v(t3)}
    s_lshl_b32 {s(s_t0)}, {s(s_mt)}, 7
    s_lshl_b32 {s(s_t1)}, {s(s_lw)}, 5
    s_add_u32 {s(s_t0)}, {s(s_t0)}, {s(s_t1)}
    v_add_u32 {v(t0)}, {s(s_t0)}, {v(t0)}
    v_mul_u32_u24 {v(t0)}, 1280, {v(t0)}
    v_lshl_add_u32 {v(dx[0])}, {v(t2)}, 4, {v(t0)}
    v_add_u32 {v(dx[1])}, {16*1280-1024}, {v(dx[0])}
    v_and_b32 {v(t2)}, 15, {v(v_lane)}
    v_lshlrev_b32 {v(t3)}, 2, {v(t1)}
    v_xor_b32 {v(t2)}, {v(t2)}, {v(t3)}
    s_lshl_b32 {s(s_t0)}, {s(s_lw)}, 3
    v_add_u32 {v(t1)}, {s(s_t0)}, {v(t1)}
    v_mul_u32_u24 {v(t1)}, 3840, {v(t1)}
    v_lshl_add_u32 {v(dw[0])}, {v(t2)}, 4, {v(t1)}
    s_lshl_b32 {s(s_t0)}, {s(s_nt)}, 8
    v_add_u32 {v(dw[0])}, {s(s_t0)}, {v(dw[0])}
    v_add_u32 {v(dw[1])}, {4*3840-1024}, {v(dw[0])}
    s_lshl_b32 {s(s_m0x)}, {s(s_lw)}, 11
    s_add_u32 {s(s_m0w)}, {s(s_m0x)}, 8192
    s_add_u32 {s(s_kc)}, {s(s_mt)}, {s(s_nt)}""")
    d, step = stag
    m = (65536 + d - 1) // d
    g(f"""s_mul_i32 {s(s_t0)}, {s(s_kc)}, {m}
    s_lshr_b32 {s(s_t0)}, {s(s_t0)}, 16
    s_mul_i32 {s(s_t0)}, {s(s_t0)}, {d}
    s_sub_u32 {s(s_kc)}, {s(s_kc)}, {s(s_t0)}
    s_mul_i32 {s(s_kc)}, {s(s_kc)}, {step}
    s_cmp_ge_u32 {s(s_kc)}, {NCH}
    s_cselect_b32 {s(s_t0)}, {NCH}, 0
    s_sub_u32 {s(s_kc)}, {s(s_kc)}, {s(s_t0)}
    s_mov_b32 {s(s_sl)}, 0""")
    def dma():
        g(f"""s_add_u32 m0, {s(s_m0x)}, {s(s_sl)}
        s_lshl_b32 {s(s_kx)}, {s(s_kc)}, 6
        s_mul_i32 {s(s_kw)}, {s(s_kc)}, {32*3840}
        buffer_load_dwordx4 {v(dx[0])}, {sr(SX,4)}, {s(s_kx)} offen lds
        buffer_load_dwordx4 {v(dx[1])}, {sr(SX,4)}, {s(s_kx)} offen offset:1024 lds
        s_add_u32 m0, {s(s_m0w)}, {s(s_sl)}
        s_add_u32 {s(s_kc)}, {s(s_kc)}, 1
        buffer_load_dwordx4 {v(dw[0])}, {sr(SW,4)}, {s(s_kw)} offen lds
        buffer_load_dwordx4 {v(dw[1])}, {sr(SW,4)}, {s(s_kw)} offen offset:1024 lds
        s_cmp_eq_u32 {s(s_kc)}, {NCH}
        s_cselect_b32 {s(s_kc)}, 0, {s(s_kc)}
        s_add_u32 {s(s_sl)}, {s(s_sl)}, {SLOT}
        s_cmp_eq_u32 {s(s_sl)}, {NS*SLOT}
        s_cselect_b32 {s(s_sl)}, 0, {s(s_sl)}""")
    if ready: ready()
    dma(); dma()
    g("s_waitcnt vmcnt(4)\ns_barrier")
    dma(); dma()
    g(f"s_mov_b32 {s(s_it)}, 16")
    g.label(L('ll'))
    g("s_waitcnt vmcnt(8)\ns_barrier")
    dma()
    g(f"s_sub_u32 {s(s_it)}, {s(s_it)}, 1\ns_cmp_lg_u32 {s(s_it)}, 0\ns_cbranch_scc1 {L('ll')}")
    g("s_waitcnt vmcnt(8)\ns_barrier")
    g("s_waitcnt vmcnt(4)\ns_barrier")
    g("s_waitcnt vmcnt(0)\ns_barrier")
    g("s_barrier")
    if loads_done: loads_done(s_lw, s_mt, s_nt)
    g(f"s_branch {L('done')}")
    g.label(L('c'))
    ax = [6, 7]; aw, aw2 = 8, 9
    v_dummy = 10
    FR = 12
    ACC = 44
    voffs = [108, 109, 110, 111]
    ONE = 112
    PK = FR
    g(f"""v_and_b32 {v(t0)}, 31, {v(v_lane)}
    v_lshrrev_b32 {v(t1)}, 5, {v(v_lane)}
    v_lshrrev_b32 {v(t2)}, 2, {v(t0)}
    v_sub_u32 {v(t2)}, 0, {v(t2)}
    v_and_b32 {v(t2)}, 3, {v(t2)}
    v_xor_b32 {v(t2)}, {v(t2)}, {v(t1)}
    v_lshlrev_b32 {v(t2)}, 4, {v(t2)}
    v_lshl_add_u32 {v(t0)}, {v(t0)}, 6, {v(t2)}
    s_and_b32 {s(s_t0)}, {s(s_w)}, 1
    s_lshl_b32 {s(s_t0)}, {s(s_t0)}, 12
    v_add_u32 {v(ax[0])}, {s(s_t0)}, {v(t0)}
    v_xor_b32 {v(ax[1])}, 32, {v(ax[0])}
    v_lshrrev_b32 {v(t0)}, 4, {v(v_lane)}
    v_and_b32 {v(t1)}, 1, {v(t0)}
    v_lshrrev_b32 {v(t0)}, 1, {v(t0)}
    v_bfe_u32 {v(t2)}, {v(v_lane)}, 2, 2
    v_lshl_add_u32 {v(t0)}, {v(t0)}, 3, {v(t2)}
    v_lshlrev_b32 {v(t0)}, 8, {v(t0)}
    v_bfe_u32 {v(t3)}, {v(v_lane)}, 1, 1
    v_lshl_add_u32 {v(t1)}, {v(t1)}, 1, {v(t3)}
    s_lshr_b32 {s(s_t0)}, {s(s_w)}, 1
    s_lshl_b32 {s(s_t1)}, {s(s_t0)}, 3
    v_add_u32 {v(t1)}, {s(s_t1)}, {v(t1)}
    v_lshlrev_b32 {v(t2)}, 2, {v(t2)}
    v_xor_b32 {v(t1)}, {v(t1)}, {v(t2)}
    v_lshl_add_u32 {v(t0)}, {v(t1)}, 4, {v(t0)}
    v_and_b32 {v(t3)}, 1, {v(v_lane)}
    v_lshl_add_u32 {v(t0)}, {v(t3)}, 3, {v(t0)}
    v_add_u32 {v(aw)}, 8192, {v(t0)}
    v_xor_b32 {v(aw2)}, 64, {v(aw)}
    s_lshl_b32 {s(s_t0)}, {s(s_mt)}, 2
    s_and_b32 {s(s_t1)}, {s(s_w)}, 1
    s_lshl_b32 {s(s_t1)}, {s(s_t1)}, 1
    s_add_u32 {s(s_t0)}, {s(s_t0)}, {s(s_t1)}
    s_mul_i32 {s(s_base)}, {s(s_t0)}, {TSG}
    s_cmp_ge_u32 {s(s_nt)}, 10
    s_cbranch_scc1 {L('v')}""")
    def reads(st, buf):
        b = FR + buf * 16
        g(f"""ds_read_b128 {vr(b,4)}, {v(ax[st])}
        ds_read_b64_tr_b16 {vr(b+8,2)}, {v(aw)} offset:{st*4096}
        ds_read_b64_tr_b16 {vr(b+10,2)}, {v(aw)} offset:{st*4096+1024}
        ds_read_b128 {vr(b+4,4)}, {v(ax[st])} offset:2048
        ds_read_b64_tr_b16 {vr(b+12,2)}, {v(aw2)} offset:{st*4096}
        ds_read_b64_tr_b16 {vr(b+14,2)}, {v(aw2)} offset:{st*4096+1024}""")
    def mfmas(buf, vtype):
        b = FR + buf * 16
        for (j, t) in ((0, 0), (1, 0), (0, 1), (1, 1)):
            X, W = vr(b+4*j, 4), vr(b+8+4*t, 4)
            A, B = (X, W) if vtype else (W, X)
            a = ACC + 16*(2*t + j)
            g(f"v_mfma_f32_32x32x16_bf16 {vr(a,16)}, {A}, {B}, {vr(a,16)}")
    def mainloop(vtype):
        tag = "v" if vtype else "k"
        for i in range(64): g(f"v_mov_b32 {v(ACC+i)}, 0")
        if ready: ready()
        if pretouch: g(f"buffer_load_dword {v(v_dummy)}, {v(voffs[0])}, {sr(SWS,4)}, 0 offen")
        if early: early()
        g(f"s_mov_b32 {s(s_it)}, {NCH}\ns_mov_b32 {s(s_sl)}, 0")
        g("s_barrier")
        reads(0, 0)
        g.label(L('cl' + tag))
        for st in range(2):
            if st == 1:
                g(f"""s_barrier
                s_add_u32 {s(s_sl)}, {s(s_sl)}, {SLOT}
                s_cmp_eq_u32 {s(s_sl)}, {NS*SLOT}
                s_cselect_b32 {s(s_sl)}, 0, {s(s_sl)}
                s_mov_b32 {s(s_dl)}, {SLOT}
                s_cmov_b32 {s(s_dl)}, {-(NS-1)*SLOT}""")
                for r in ax + [aw, aw2]: g(f"v_add_u32 {v(r)}, {s(s_dl)}, {v(r)}")
            reads(1 - st, 1 - st)
            g("s_waitcnt lgkmcnt(6)")
            mfmas(st, vtype)
        g(f"s_sub_u32 {s(s_it)}, {s(s_it)}, 1\ns_cmp_lg_u32 {s(s_it)}, 0\ns_cbranch_scc1 {L('cl' + tag)}")
        g("s_waitcnt lgkmcnt(0)\ns_nop 15\ns_nop 3")
    g(f"""v_lshrrev_b32 {v(t2)}, 1, {v(v_lane)}
    v_xor_b32 {v(t2)}, {v(t2)}, {v(v_lane)}
    v_and_b32 {v(t2)}, 1, {v(t2)}
    v_mul_u32_u24 {v(t2)}, 0x18, {v(t2)}
    v_xor_b32 {v(aw)}, {v(aw)}, {v(t2)}
    v_xor_b32 {v(aw2)}, {v(aw2)}, {v(t2)}
    s_cmp_ge_u32 {s(s_nt)}, 5
    s_mov_b32 {s(s_scale)}, {f32hex(QSCALE)}
    s_cmov_b32 {s(s_scale)}, 1.0
    s_mov_b32 {s(s_t1)}, {WS_T + T_Q}
    s_cmov_b32 {s(s_t1)}, {WS_T + T_K}
    s_add_u32 {s(s_base)}, {s(s_base)}, {s(s_t1)}
    s_cselect_b32 {s(s_t0)}, 5, 0""")
    g(f"""s_cmp_ge_u32 {s(s_nt)}, 5
    s_cselect_b32 {s(s_t0)}, 5, 0
    s_sub_u32 {s(s_t0)}, {s(s_nt)}, {s(s_t0)}
    s_lshl_b32 {s(s_t0)}, {s(s_t0)}, 4
    s_lshr_b32 {s(s_t1)}, {s(s_w)}, 1
    s_lshl_b32 {s(s_t1)}, {s(s_t1)}, 3
    s_add_u32 {s(s_t0)}, {s(s_t0)}, {s(s_t1)}
    v_lshrrev_b32 {v(t0)}, 5, {v(v_lane)}
    v_add_u32 {v(t0)}, {s(s_t0)}, {v(t0)}                  ; gamma0
    v_and_b32 {v(t1)}, 31, {v(v_lane)}""")
    for t in range(2):
        for G in range(2):
            o = voffs[2*t + G]
            g(f"""v_add_u32 {v(t2)}, {4*t + 2*G}, {v(t0)}
            v_mul_u32_u24 {v(t3)}, 205, {v(t2)}
            v_lshrrev_b32 {v(t3)}, 10, {v(t3)}
            v_mul_u32_u24 {v(o)}, 5, {v(t3)}
            v_sub_u32 {v(t2)}, {v(t2)}, {v(o)}
            v_mul_u32_u24 {v(o)}, 2560, {v(t3)}
            v_add_u32 {v(o)}, {s(s_base)}, {v(o)}
            v_cmp_lt_u32 vcc, 2, {v(t2)}
            v_subrev_u32 {v(t3)}, 1, {v(t2)}
            s_nop 0
            v_cndmask_b32 {v(t3)}, {v(t2)}, {v(t3)}, vcc
            v_cmp_eq_u32 vcc, 2, {v(t2)}
            s_nop 1
            v_cndmask_b32 {v(t3)}, {v(t3)}, 4, vcc
            v_lshl_add_u32 {v(o)}, {v(t3)}, 9, {v(o)}
            v_lshl_add_u32 {v(o)}, {v(t1)}, 4, {v(o)}""")
    mainloop(False)
    g(f"s_mov_b32 {s(s_t0)}, {TSG}")
    k = 0
    for t in range(2):
        for j in range(2):
            for G in range(2):
                a = ACC + 16*(2*t + j) + 8*G
                for q in range(8): g(f"v_mul_f32 {v(a+q)}, {s(s_scale)}, {v(a+q)}")
                p = PK + 4*(k % 8); k += 1
                for q in range(4): g(f"v_cvt_pk_bf16_f32 {v(p+q)}, {v(a+2*q)}, {v(a+2*q+1)}")
                g(f"buffer_store_dwordx4 {vr(p,4)}, {v(voffs[2*t+G])}, {sr(SWS,4)}, {'0' if j==0 else s(s_t0)} offen{sfx}")
    g(f"s_branch {L('done')}")
    g.label(L('v'))
    g(f"""s_add_u32 {s(s_base)}, {s(s_base)}, {WS_T + T_V}
    s_sub_u32 {s(s_t0)}, {s(s_nt)}, 10
    s_lshl_b32 {s(s_t0)}, {s(s_t0)}, 7
    s_lshr_b32 {s(s_t1)}, {s(s_w)}, 1
    s_lshl_b32 {s(s_t1)}, {s(s_t1)}, 6
    s_add_u32 {s(s_t0)}, {s(s_t0)}, {s(s_t1)}
    v_and_b32 {v(t0)}, 31, {v(v_lane)}
    v_add_u32 {v(t0)}, {s(s_t0)}, {v(t0)}""")
    for t in range(2):
        g(f"""v_add_u32 {v(t2)}, {32*t}, {v(t0)}
        v_mul_u32_u24 {v(t1)}, 410, {v(t2)}
        v_lshrrev_b32 {v(t1)}, 16, {v(t1)}
        v_mul_u32_u24 {v(t3)}, 160, {v(t1)}
        v_sub_u32 {v(t3)}, {v(t2)}, {v(t3)}
        v_mul_u32_u24 {v(voffs[t])}, {V_GS}, {v(t1)}
        v_lshl_add_u32 {v(voffs[t])}, {v(t3)}, 4, {v(voffs[t])}
        v_lshrrev_b32 {v(t3)}, 5, {v(v_lane)}
        v_mul_u32_u24 {v(t3)}, 2560, {v(t3)}
        v_add_u32 {v(voffs[t])}, {v(voffs[t])}, {v(t3)}
        v_add_u32 {v(voffs[t])}, {s(s_base)}, {v(voffs[t])}""")
    for q in range(4): g(f"v_mov_b32 {v(ONE+q)}, 0x3f803f80")
    mainloop(True)
    k = 0
    g(f"s_mov_b32 {s(s_t1)}, {TSG}\ns_mov_b32 {s(s_kx)}, 5120\ns_mov_b32 {s(s_kw)}, {TSG + 5120}")
    for t in range(2):
        for j in range(2):
            for u in range(2):
                a = ACC + 16*(2*t + j) + 8*u
                p = PK + 4*(k % 8); k += 1
                for q in range(4): g(f"v_cvt_pk_bf16_f32 {v(p+q)}, {v(a+2*q)}, {v(a+2*q+1)}")
                so = ["0", s(s_kx), s(s_t1), s(s_kw)][2*j + u]
                g(f"buffer_store_dwordx4 {vr(p,4)}, {v(voffs[t])}, {sr(SWS,4)}, {so} offen{sfx}")
    g(f"""s_cmp_ge_u32 {s(s_nt)}, 14
    s_cbranch_scc1 {L('done')}
    s_cmp_ge_u32 {s(s_w)}, 2
    s_cbranch_scc1 {L('done')}
    s_sub_u32 {s(s_t0)}, {s(s_nt)}, 10
    s_mul_i32 {s(s_t0)}, {s(s_t0)}, {V_GS}
    s_add_u32 {s(s_t0)}, {s(s_t0)}, {s(s_base)}
    s_add_u32 {s(s_t0)}, {s(s_t0)}, 10240
    s_add_u32 {s(s_t1)}, {s(s_t0)}, {TSG}
    v_lshlrev_b32 {v(t0)}, 4, {v(v_lane)}
    s_mov_b64 exec, 0xff
    buffer_store_dwordx4 {vr(ONE,4)}, {v(t0)}, {sr(SWS,4)}, {s(s_t0)} offen{sfx}
    buffer_store_dwordx4 {vr(ONE,4)}, {v(t0)}, {sr(SWS,4)}, {s(s_t1)} offen{sfx}
    s_mov_b64 exec, -1""")
    g.label(L('done'))
    return dict(lds=NS*SLOT)
```

```python
from common2 import *

NSLOT = 3

SEQ_DEFAULT = ["M1","e0","e1","e2","e3","M2","LK","e4","e5","e6","c0","c1","M3","e7","e8","e9","c2","c3","M4","LV","e10","e11","c4","e12","e13","c5","e14","e15","nop","c6","c7"]

def gen_att_role(g, L, P, sc1=False, sched=None, stamps=None, wait_fn=None, publish_fn=None, prio=None, prof=False, split=False, gate=True, stag=False, vmask=False, xs=(), dma_old=False, sync_hook=None, epi_prio=None, pre_publish=None, ready=None, post_issue=None, sc1_in=None, kstag=True, pair=False, swap_prio=None, n0=4, dma_grp=0, align=None, e64=False):
    KR = 512 if pair else 256
    VO = 1024 + KR
    KVT = VO + 1344
    SLOT = 8 * KVT
    XCH = 2 * SLOT
    LDS_FLAG = XCH + 24576
    ATT_LDS = LDS_FLAG + 64
    NKP = 64 + KR // 16
    NP = NKP + 84
    SWS, SX, SG = P["SWS"], P["SX"], P["SG"]
    s_id, s_w = P["s_id"], P["s_w"]
    sfx = " sc1" if sc1 else ""
    sfi = sfx if sc1_in is None else (" sc1" if sc1_in else "")
    s_head, s_qb, s_qg, s_kh, s_t0, s_t1, s_t2 = 40, 41, 42, 43, 44, 45, 46
    s_m0, s_c, s_dlt, s_slot, s_fb, s_dslot, s_cc = 47, 48, 49, 50, 51, 52, 53
    v_lane = 1; T = [68, 69, 70, 71, 72, 73, 74, 75]
    Qm = [10, 14]; Qr = [18, 20]
    KmB, KrB = [22, 2], [26, 6]
    V0B, V1B = [28, 124], [32, 120]
    Km, Kr, V0, V1 = 22, 26, 28, 32
    Pp = [36, 44]; Sx = [52, 68]; O = [84, 100]
    aK, aR, aV = 116, 117, 118
    vd = [119, 8, 9]
    M = [36, 37]
    SEQ = sched or SEQ_DEFAULT
    g(f"""s_and_b32 {s(s_t0)}, {s(s_id)}, 7
    s_lshl_b32 {s(s_t0)}, {s(s_t0)}, 2
    s_bfe_u32 {s(s_t1)}, {s(s_id)}, 0x20003
    s_add_u32 {s(s_head)}, {s(s_t0)}, {s(s_t1)}
    s_lshr_b32 {s(s_qb)}, {s(s_id)}, 5
    s_and_b32 {s(s_qg)}, {s(s_w)}, 3
    s_lshr_b32 {s(s_kh)}, {s(s_w)}, 2
    s_mul_i32 {s(s_m0)}, {s(s_w)}, {KVT}
    s_mov_b32 {s(s_fb)}, 0""")
    gx, gw_ = Sx[0], Sx[0] + 8
    if gate:
        g(f"""s_lshl_b32 {s(s_t0)}, {s(s_qb)}, 8
        s_lshl_b32 {s(s_t1)}, {s(s_head)}, 3
        s_add_u32 {s(s_t0)}, {s(s_t0)}, {s(s_t1)}
        s_add_u32 {s(s_t0)}, {s(s_t0)}, {s(s_w)}
        s_mul_i32 {s(s_t1)}, {s(s_t0)}, 1280
        s_lshl_b32 {s(s_t2)}, {s(s_t0)}, 2
        s_add_u32 {s(s_t2)}, {s(s_t2)}, {WS_G2}
        v_lshlrev_b32 {v(T[1])}, 5, {v(v_lane)}""")
        for i in range(16): g(f"v_mov_b32 {v(gx+i)}, 0")
        g(f"""s_mov_b32 exec_hi, 0xff
        buffer_load_dwordx4 {vr(gx,4)}, {v(T[1])}, {sr(SX,4)}, {s(s_t1)} offen
        buffer_load_dwordx4 {vr(gx+4,4)}, {v(T[1])}, {sr(SX,4)}, {s(s_t1)} offen offset:16
        buffer_load_dwordx4 {vr(gw_,4)}, {v(T[1])}, {sr(SG,4)}, 0 offen
        buffer_load_dwordx4 {vr(gw_+4,4)}, {v(T[1])}, {sr(SG,4)}, 0 offen offset:16
        s_mov_b32 exec_hi, -1""")
    s_hb, s_rb = 54, 55
    if pair:
        g(f"""s_lshr_b32 {s(s_hb)}, {s(s_head)}, 1
        s_mul_i32 {s(s_hb)}, {s(s_hb)}, 2560
        s_add_u32 {s(s_rb)}, {s(s_hb)}, 2048
        s_and_b32 {s(s_t0)}, {s(s_head)}, 1
        s_lshl_b32 {s(s_t0)}, {s(s_t0)}, 10
        s_add_u32 {s(s_hb)}, {s(s_hb)}, {s(s_t0)}""")
    else:
        g(f"s_mul_i32 {s(s_hb)}, {s(s_head)}, 1280\ns_add_u32 {s(s_rb)}, {s(s_hb)}, 1024")
    g(f"""s_add_u32 {s(s_t0)}, {s(s_hb)}, {T_K}                    ; K base
    s_lshr_b32 {s(s_t1)}, {s(s_head)}, 3
    s_mul_i32 {s(s_t1)}, {s(s_t1)}, {V_GS}
    s_add_u32 {s(s_t1)}, {s(s_t1)}, {T_V}
    s_and_b32 {s(s_c)}, {s(s_head)}, 7
    s_mul_i32 {s(s_c)}, {s(s_c)}, 320                        ; 20*(head&7)*16
    v_lshlrev_b32 {v(vd[0])}, 4, {v(v_lane)}
    v_add_u32 {v(vd[0])}, {s(s_t0)}, {v(vd[0])}""")
    for j in (1, 2):
        g(f"""v_add_u32 {v(T[2])}, {64*j - NKP}, {v(v_lane)}
        v_max_i32 {v(T[3])}, 0, {v(T[2])}
        v_mul_u32_u24 {v(T[4])}, 3121, {v(T[3])}
        v_lshrrev_b32 {v(T[4])}, 16, {v(T[4])}                ; uh = q/21
        v_mul_u32_u24 {v(T[5])}, 21, {v(T[4])}
        v_sub_u32 {v(T[5])}, {v(T[3])}, {v(T[5])}             ; d
        v_mul_u32_u24 {v(T[4])}, 2560, {v(T[4])}
        v_lshl_add_u32 {v(T[4])}, {v(T[5])}, 4, {v(T[4])}
        v_add_u32 {v(T[4])}, {s(s_c)}, {v(T[4])}
        v_cmp_eq_u32 vcc, 20, {v(T[5])}
        v_mov_b32 {v(T[6])}, 10240
        s_nop 0
        v_cndmask_b32 {v(T[4])}, {v(T[4])}, {v(T[6])}, vcc
        v_add_u32 {v(vd[j])}, {s(s_t1)}, {v(T[4])}""")
        if j == 1:
            g(f"""v_lshlrev_b32 {v(T[6])}, 4, {v(v_lane)}
            v_add_u32 {v(T[6])}, {T_K}, {v(T[6])}
            v_add_u32 {v(T[6])}, {s(s_rb)}, {v(T[6])}
            v_cmp_gt_i32 vcc, 0, {v(T[2])}
            s_nop 1
            v_cndmask_b32 {v(vd[1])}, {v(vd[1])}, {v(T[6])}, vcc""")
        g(f"v_subrev_u32 {v(vd[j])}, {1024*j}, {v(vd[j])}")
    if ready: ready()
    if not gate:
        pass
    def dma(s_chunk, s_lds):
        g(f"""s_lshl_b32 {s(s_t2)}, {s(s_chunk)}, 3
        s_add_u32 {s(s_t2)}, {s(s_t2)}, {s(s_w)}
        s_mul_i32 {s(s_t2)}, {s(s_t2)}, {TSG}
        s_mov_b32 m0, {s(s_lds)}
        s_add_u32 {s(s_t2)}, {s(s_t2)}, {WS_T}
        buffer_load_dwordx4 {v(vd[0])}, {sr(SWS,4)}, {s(s_t2)} offen{sfi} lds
        buffer_load_dwordx4 {v(vd[1])}, {sr(SWS,4)}, {s(s_t2)} offen offset:1024{sfi} lds
        s_mov_b32 exec_hi, {(1 << (NP - 128 - 32)) - 1}
        buffer_load_dwordx4 {v(vd[2])}, {sr(SWS,4)}, {s(s_t2)} offen offset:2048{sfi} lds
        s_mov_b32 exec_hi, -1""")
    def next_cc():
        g(f"s_add_u32 {s(s_cc)}, {s(s_cc)}, 1\ns_and_b32 {s(s_cc)}, {s(s_cc)}, 7")
    def dma_first2():
        g(f"s_mov_b32 {s(s_cc)}, {s(s_qb) if kstag else 0}\ns_mov_b32 {s(s_t1)}, {s(s_m0)}")
        dma(s_cc, s_t1); next_cc()
        g(f"s_add_u32 {s(s_t1)}, {s(s_t1)}, {SLOT}")
        dma(s_cc, s_t1); next_cc()
    def _issue():
        if wait_fn: wait_fn(s_head, s_qb)
        if stamps: stamps(1)
        g(f"""s_lshl_b32 {s(s_t1)}, {s(s_qb)}, 3
        s_lshl_b32 {s(s_t2)}, {s(s_qg)}, 1
        s_add_u32 {s(s_t1)}, {s(s_t1)}, {s(s_t2)}
        s_mul_i32 {s(s_t1)}, {s(s_t1)}, {TSG}
        s_add_u32 {s(s_t1)}, {s(s_t1)}, {WS_T + T_Q}
        s_add_u32 {s(s_t0)}, {s(s_t1)}, {s(s_hb)}
        s_add_u32 {s(s_t2)}, {s(s_t1)}, {s(s_rb)}
        s_and_b32 {s(s_t1)}, {s(s_head)}, {1 if pair else 0}
        s_lshl_b32 {s(s_t1)}, {s(s_t1)}, 3
        s_add_u32 {s(s_t2)}, {s(s_t2)}, {s(s_t1)}
        v_lshlrev_b32 {v(T[0])}, {4 if pair else 3}, {v(v_lane)}
        v_lshlrev_b32 {v(T[1])}, 4, {v(v_lane)}""")
        for j in range(2): g(f"v_mov_b32 {v(Qr[j])}, 0\nv_mov_b32 {v(Qr[j]+1)}, 0")
        g(f"""s_add_u32 {s(s_t1)}, {s(s_t0)}, {TSG}
        buffer_load_dwordx4 {vr(Qm[0],4)}, {v(T[1])}, {sr(SWS,4)}, {s(s_t0)} offen{sfi}
        buffer_load_dwordx4 {vr(Qm[1],4)}, {v(T[1])}, {sr(SWS,4)}, {s(s_t1)} offen{sfi}
        s_add_u32 {s(s_t1)}, {s(s_t2)}, {TSG}
        s_mov_b32 exec_hi, 0
        buffer_load_dwordx2 {vr(Qr[0],2)}, {v(T[0])}, {sr(SWS,4)}, {s(s_t2)} offen{sfi}
        buffer_load_dwordx2 {vr(Qr[1],2)}, {v(T[0])}, {sr(SWS,4)}, {s(s_t1)} offen{sfi}
        s_mov_b32 exec_hi, -1""")
        dma_first2()

        if post_issue: post_issue()
    if not gate: _issue()
    g(f"""s_mul_i32 {s(s_t0)}, {s(s_kh)}, {n0*KVT}
    v_lshlrev_b32 {v(aK)}, 4, {v(v_lane)}
    v_add_u32 {v(aK)}, {s(s_t0)}, {v(aK)}
    v_and_b32 {v(T[0])}, 31, {v(v_lane)}
    v_lshrrev_b32 {v(T[1])}, 5, {v(v_lane)}
    v_lshlrev_b32 {v(aR)}, {4 if pair else 3}, {v(T[0])}
    s_and_b32 {s(s_t1)}, {s(s_head)}, {1 if pair else 0}
    s_lshl_b32 {s(s_t1)}, {s(s_t1)}, 3
    s_add_u32 {s(s_t1)}, {s(s_t1)}, 1024
    v_add_u32 {v(aR)}, {s(s_t1)}, {v(aR)}
    v_cmp_eq_u32 vcc, 1, {v(T[1])}
    v_mov_b32 {v(T[2])}, {VO + 320}
    s_nop 0
    v_cndmask_b32 {v(aR)}, {v(aR)}, {v(T[2])}, vcc
    v_add_u32 {v(aR)}, {s(s_t0)}, {v(aR)}
    v_min_u32 {v(T[2])}, 20, {v(T[0])}
    v_cmp_le_u32 vcc, 28, {v(T[0])}
    v_mul_u32_u24 {v(T[3])}, 21, {v(T[1])}
    s_nop 0
    v_cndmask_b32 {v(T[2])}, {v(T[2])}, 4, vcc
    v_add_u32 {v(T[2])}, {v(T[2])}, {v(T[3])}
    v_lshlrev_b32 {v(aV)}, 4, {v(T[2])}
    v_add_u32 {v(aV)}, {s(s_t0)}, {v(aV)}
    v_mov_b32 {v(T[4])}, 0
    v_mov_b32 {v(T[5])}, {LDS_FLAG}
    ds_write_b32 {v(T[5])}, {v(T[4])}""")
    if gate:
        acc = T[6]
        g(f"s_waitcnt vmcnt(0)\nv_mov_b32 {v(acc)}, 0")
        for i in range(8): g(f"v_dot2_f32_bf16 {v(acc)}, {v(gx+i)}, {v(gw_+i)}, {v(acc)}")
        g("s_nop 3")
        for dpp in ["row_shr:1", "row_shr:2", "row_shr:4", "row_shr:8", "row_bcast:15 row_mask:0xa", "row_bcast:31 row_mask:0xc"]:
            g(f"s_nop 1\nv_add_f32_dpp {v(acc)}, {v(acc)}, {v(acc)} {dpp} bank_mask:0xf" if "row_mask" in dpp else f"s_nop 1\nv_add_f32_dpp {v(acc)}, {v(acc)}, {v(acc)} {dpp} row_mask:0xf bank_mask:0xf bound_ctrl:0")
        g(f"""v_mul_f32 {v(acc)}, {f32hex(-1.4426950408889634)}, {v(acc)}
        v_exp_f32 {v(acc)}, {v(acc)}
        s_nop 0
        v_add_f32 {v(acc)}, 1.0, {v(acc)}
        v_rcp_f32 {v(acc)}, {v(acc)}
        v_mov_b32 {v(T[7])}, 0
        s_mov_b32 exec_lo, 0
        s_mov_b32 exec_hi, 0x80000000
        buffer_store_dword {v(acc)}, {v(T[7])}, {sr(SWS,4)}, {s(s_t2)} offen{sfx}
        s_mov_b64 exec, -1""")
    if gate: _issue()
    def qk16(dst, X, b=0): g(f"v_mfma_f32_32x32x16_bf16 {vr(Sx[dst],16)}, {vr(KmB[b],4)}, {vr(Qm[X],4)}, 0")
    def qk8(dst, X, b=0): g(f"v_mfma_f32_32x32x8_bf16 {vr(Sx[dst],16)}, {vr(KrB[b],2)}, {vr(Qr[X],2)}, {vr(Sx[dst],16)}")
    def pv(X, u, b=0): g(f"v_mfma_f32_32x32x16_bf16 {vr(O[X],16)}, {vr(V0B[b] if u == 0 else V1B[b],4)}, {vr(Pp[X]+4*u,4)}, {vr(O[X],16)}")
    def ldK(toff, b=0): g(f"ds_read_b128 {vr(KmB[b],4)}, {v(aK)} offset:{toff}\nds_read_b64 {vr(KrB[b],2)}, {v(aR)} offset:{toff}")
    def ldV(toff, b=0):
        if vmask: g("s_mov_b64 exec, s[82:83]")
        g(f"ds_read_b128 {vr(V0B[b],4)}, {v(aV)} offset:{toff+VO}\nds_read_b128 {vr(V1B[b],4)}, {v(aV)} offset:{toff+VO+672}")
        if vmask: g("s_mov_b64 exec, -1")
    def e(X, r): g(f"v_exp_f32{'_e64' if e64 else ''} {v(Sx[X]+r)}, {v(Sx[X]+r)}")
    def cv(X, k): g(f"v_cvt_pk_bf16_f32 {v(Pp[X]+k)}, {v(Sx[X]+2*k)}, {v(Sx[X]+2*k+1)}")
    cnt = [0]
    def cs_sync():
        if "nosync" in xs: return
        if prof: g("s_memtime s[84:85]")
        g("s_waitcnt vmcnt(0)")
        if prof: g("s_memtime s[86:87]")
        g("s_barrier")
        if prof: g("s_memtime s[88:89]\ns_waitcnt lgkmcnt(0)\ns_sub_u32 s86, s86, s84\ns_add_u32 s90, s90, s86\ns_sub_u32 s88, s88, s84\ns_add_u32 s91, s91, s88")
        if sync_hook: sync_hook(s_c)
        g(f"""s_add_u32 {s(s_slot)}, {s(s_slot)}, {SLOT}
        s_cmp_ge_u32 {s(s_slot)}, {NSLOT*SLOT}
        s_cselect_b32 {s(s_slot)}, 0, {s(s_slot)}
        s_mov_b32 {s(s_dlt)}, {SLOT}
        s_cmov_b32 {s(s_dlt)}, {-(NSLOT-1)*SLOT}
        v_add_u32 {v(aK)}, {s(s_dlt)}, {v(aK)}
        v_add_u32 {v(aR)}, {s(s_dlt)}, {v(aR)}""")
    def cs_dma(kh=None):
        if "nodma" in xs: return
        if prof: g("s_memtime s[84:85]")
        cs_dma_(kh)
        if prof: g("s_memtime s[86:87]\ns_waitcnt lgkmcnt(0)\ns_sub_u32 s86, s86, s84\ns_add_u32 s79, s79, s86")
    def cs_dma_(kh=None):
        n = cnt[0]; cnt[0] += 1
        g(f"s_cmp_ge_u32 {s(s_c)}, 6\ns_cbranch_scc1 {L('nodma')}{n}")
        if kh is not None: g(f"s_cmp_lg_u32 {s(s_kh)}, {kh}\ns_cbranch_scc1 {L('nodma')}{n}")
        if dma_old and kh is None:
            g(f"s_cmp_lg_u32 {s(s_kh)}, {dma_grp}\ns_cbranch_scc1 {L('nodma')}{n}")
            g(f"s_add_u32 {s(s_t1)}, {s(s_dslot)}, {s(s_m0)}")
            dma(s_cc, s_t1)
            op_ = "s_add_u32" if dma_grp == 0 else "s_sub_u32"
            g(f"""{op_} {s(s_t2)}, {s(s_t2)}, {4*TSG}
            {op_} m0, {s(s_t1)}, {4*KVT}
            s_nop 0
            buffer_load_dwordx4 {v(vd[0])}, {sr(SWS,4)}, {s(s_t2)} offen{sfi} lds
            buffer_load_dwordx4 {v(vd[1])}, {sr(SWS,4)}, {s(s_t2)} offen offset:1024{sfi} lds
            s_mov_b32 exec_hi, {(1 << (NP - 128 - 32)) - 1}
            buffer_load_dwordx4 {v(vd[2])}, {sr(SWS,4)}, {s(s_t2)} offen offset:2048{sfi} lds
            s_mov_b32 exec_hi, -1""")
            next_cc()
        else:
            g(f"s_add_u32 {s(s_t1)}, {s(s_dslot)}, {s(s_m0)}")
            dma(s_cc, s_t1); next_cc()
        g(f"""s_add_u32 {s(s_dslot)}, {s(s_dslot)}, {SLOT}
        s_cmp_ge_u32 {s(s_dslot)}, {NSLOT*SLOT}
        s_cselect_b32 {s(s_dslot)}, 0, {s(s_dslot)}""")
        g.label(f"{L('nodma')}{n}")
    def chunk_switch():
        cs_sync(); cs_dma()
    def phase(X, i, n=4, grp=None):
        Y = 1 - X
        waited = False
        for op in SEQ:
            if op in ("M1", "M3") and not waited:
                waited = True
                if X == 1 and "nolds" not in xs: g("s_waitcnt lgkmcnt(4)")
            if op == "M1":
                if "nomfma" not in xs: qk16(Y, Y, (i + X) & 1)
            elif op == "M2":
                if "nomfma" not in xs: qk8(Y, Y, (i + X) & 1)
            elif op == "M3":
                if "nomfma" not in xs: pv(Y, 0, (i + 1 - X) & 1)
            elif op == "M4":
                if "nomfma" not in xs: pv(Y, 1, (i + 1 - X) & 1)
            elif op == "LK":
                if X == 0:
                    if i == n - 2:
                        cs_sync()
                        if not (dma_old and grp is not None and grp != dma_grp): cs_dma(0 if stag else None)
                    if i == n - 1 and stag: cs_dma(1)
                    if "nolds" not in xs: ldK(((i + 2) % n) * KVT, i & 1)
            elif op == "LV":
                if X == 0:
                    if i == n - 1: g(f"v_add_u32 {v(aV)}, {s(s_dlt)}, {v(aV)}")
                    if "nolds" not in xs: ldV(((i + 1) % n) * KVT, (i + 1) & 1)
            elif op == "nop": g("s_nop 0")
            elif op[0] == "e": e(X, int(op[1:]))
            elif op[0] == "c": cv(X, int(op[1:]))

    if prof: g("s_mov_b32 s90, 0\ns_mov_b32 s91, 0\ns_mov_b32 s79, 0")
    g.label(L('restart'))
    for X in range(2):
        for r in range(16): g(f"v_mov_b32 {v(O[X]+r)}, 0")
    for r in range(8): g(f"v_mov_b32 {v(Pp[1]+r)}, 0")
    for r in range(4): g(f"v_mov_b32 {v(V0B[1]+r)}, 0\nv_mov_b32 {v(V1B[1]+r)}, 0\nv_mov_b32 {v(V0B[0]+r)}, 0\nv_mov_b32 {v(V1B[0]+r)}, 0")
    if vmask: g("s_mov_b32 s82, 0x1fffff\ns_mov_b32 s83, 0x1fffff")
    g(f"""s_mov_b32 {s(s_c)}, 0
    s_mov_b32 {s(s_slot)}, 0
    s_mov_b32 {s(s_dslot)}, {2*SLOT}
    s_waitcnt vmcnt(3) lgkmcnt(0)
    s_barrier""")
    if stamps: stamps(2)
    ldK(0, 0); ldK(KVT, 1); ldV(0, 0)
    g("s_waitcnt lgkmcnt(4)")
    qk16(0, 0, 0); qk8(0, 0, 0)
    g("s_waitcnt lgkmcnt(0)\ns_nop 7\ns_nop 3")
    if prio is not None: g(f"s_setprio {prio}")
    if split:
        g(f"s_cmp_eq_u32 {s(s_kh)}, 0\ns_cbranch_scc1 {L('nosplit')}\ns_setprio {prio+2}")
        g.label(L('nosplit'))
    def loop_body(tag, n, grp):
        if align == "p6": g.raw(".p2align 6")
        if align == "p6s4": g.raw(".p2align 6"); g("s_nop 0")
        if align == "s4": g("s_nop 0")
        g.label(L('loop' + tag))
        for i in range(n):
            if swap_prio is not None and i in swap_prio:
                hi_kh = swap_prio[i]
                k_ = cnt[0]; cnt[0] += 1
                g(f"s_cmp_eq_u32 {s(s_kh)}, {hi_kh}\ns_cbranch_scc1 {L('sp')}{k_}\ns_setprio 1\ns_branch {L('sq')}{k_}")
                g.label(f"{L('sp')}{k_}"); g("s_setprio 2"); g.label(f"{L('sq')}{k_}")
            phase(0, i, n, grp); phase(1, i, n, grp)
        g(f"""s_add_u32 {s(s_c)}, {s(s_c)}, 1
        s_cmp_lt_u32 {s(s_c)}, 8
        s_cbranch_scc1 {L('loop' + tag)}""")
    if n0 == 4:
        loop_body("", 4, None)
    else:
        g(f"s_cmp_lg_u32 {s(s_kh)}, 0\ns_cbranch_scc1 {L('grp1')}")
        loop_body("a", n0, 0)
        g(f"s_branch {L('loopend')}")
        g.label(L('grp1'))
        loop_body("b", 8 - n0, 1)
        g.label(L('loopend'))
    if stamps: stamps(3)
    g("s_nop 1")
    pv(1, 0, 1); pv(1, 1, 1)
    g("s_waitcnt lgkmcnt(0)")
    if epi_prio is not None: g(f"s_setprio {epi_prio}")
    g(f"""s_mul_i32 {s(s_t0)}, {s(s_w)}, 3072
    s_add_u32 {s(s_t0)}, {s(s_t0)}, {XCH}
    v_lshlrev_b32 {v(T[0])}, 4, {v(v_lane)}
    v_add_u32 {v(T[1])}, {s(s_t0)}, {v(T[0])}
    s_xor_b32 {s(s_t1)}, {s(s_w)}, 4
    s_mul_i32 {s(s_t1)}, {s(s_t1)}, 3072
    s_add_u32 {s(s_t1)}, {s(s_t1)}, {XCH}
    v_add_u32 {v(T[2])}, {s(s_t1)}, {v(T[0])}
    s_nop 3
    s_cmp_eq_u32 {s(s_kh)}, 0
    s_cbranch_scc1 {L('kh0')}""")
    for q in range(3): g(f"ds_write_b128 {v(T[1])}, {vr(O[0]+4*q,4)} offset:{q*1024}")
    for r in range(12): g(f"v_mov_b32 {v(O[0]+r)}, {v(O[1]+r)}")
    g(f"s_branch {L('sent')}")
    g.label(L('kh0'))
    g("s_nop 7")
    for q in range(3): g(f"ds_write_b128 {v(T[1])}, {vr(O[1]+4*q,4)} offset:{q*1024}")
    g.label(L('sent'))
    R = Sx[0]
    g("s_waitcnt lgkmcnt(0)\ns_barrier")
    for q in range(3): g(f"ds_read_b128 {vr(R+4*q,4)}, {v(T[2])} offset:{q*1024}")
    g(f"""v_and_b32 {v(T[0])}, 31, {v(v_lane)}
    v_mul_u32_u24 {v(T[0])}, 48, {v(T[0])}
    v_lshrrev_b32 {v(T[1])}, 5, {v(v_lane)}
    v_lshl_add_u32 {v(T[0])}, {v(T[1])}, 3, {v(T[0])}
    s_lshl_b32 {s(s_t0)}, {s(s_w)}, 11
    s_add_u32 {s(s_t0)}, {s(s_t0)}, 24576
    v_add_u32 {v(T[0])}, {s(s_t0)}, {v(T[0])}
    v_lshlrev_b32 {v(T[2])}, 4, {v(v_lane)}
    v_add_u32 {v(T[1])}, {s(s_t0)}, {v(T[2])}
    s_lshl_b32 {s(s_t0)}, {s(s_qb)}, 8
    s_lshl_b32 {s(s_t1)}, {s(s_qg)}, 6
    s_add_u32 {s(s_t0)}, {s(s_t0)}, {s(s_t1)}
    s_lshl_b32 {s(s_t1)}, {s(s_kh)}, 5
    s_add_u32 {s(s_t0)}, {s(s_t0)}, {s(s_t1)}
    s_mul_i32 {s(s_t0)}, {s(s_t0)}, 48
    s_mul_i32 {s(s_t1)}, {s(s_head)}, {O_HS}
    s_add_u32 {s(s_t0)}, {s(s_t0)}, {s(s_t1)}
    s_add_u32 {s(s_t0)}, {s(s_t0)}, {WS_O2}
    s_waitcnt lgkmcnt(0)""")
    Fo = O[0]
    for r in range(12): g(f"v_add_f32 {v(Fo+r)}, {v(Fo+r)}, {v(R+r)}")
    g(f"""v_mov_b32 {v(T[3])}, {v(Fo+8)}
    v_mov_b32 {v(T[4])}, {v(Fo+8)}
    s_nop 1
    v_permlane32_swap_b32 {v(T[3])}, {v(T[4])}
    s_nop 1
    v_rcp_f32 {v(T[5])}, {v(T[4])}
    v_mov_b32 {v(T[6])}, 0""")
    for r in range(12): g(f"v_mul_f32 {v(Fo+r)}, {v(Fo+r)}, {v(T[5])}")
    for r in range(12): g(f"v_fma_f32 {v(T[6])}, {v(Fo+r)}, 0, {v(T[6])}")
    g(f"""s_mov_b32 exec_lo, 0
    v_mov_b32 {v(Fo+8)}, 0
    v_mov_b32 {v(Fo+9)}, 0
    v_mov_b32 {v(Fo+10)}, 0
    v_mov_b32 {v(Fo+11)}, 0
    s_mov_b32 exec_lo, -1""")
    for q in range(3):
        g(f"v_cvt_pk_bf16_f32 {v(R+2*q)}, {v(Fo+4*q)}, {v(Fo+4*q+1)}\nv_cvt_pk_bf16_f32 {v(R+2*q+1)}, {v(Fo+4*q+2)}, {v(Fo+4*q+3)}")
    g(f"""ds_write_b64 {v(T[0])}, {vr(R,2)}
    ds_write_b64 {v(T[0])}, {vr(R+2,2)} offset:16
    ds_write_b64 {v(T[0])}, {vr(R+4,2)} offset:32
    v_cmp_o_f32 vcc, {v(T[6])}, {v(T[6])}
    s_mov_b32 {s(s_t1)}, 0x21800000
    v_cmp_lt_f32 s[92:93], {s(s_t1)}, {v(T[4])}
    s_mov_b32 {s(s_t1)}, 0x5d800000
    v_cmp_gt_f32 s[94:95], {s(s_t1)}, {v(T[4])}
    s_waitcnt lgkmcnt(0)
    ds_read_b128 {vr(R+8,4)}, {v(T[1])}
    ds_read_b128 {vr(R+12,4)}, {v(T[1])} offset:1024
    s_and_b64 vcc, vcc, s[92:93]
    s_and_b64 vcc, vcc, s[94:95]
    s_cmp_eq_u64 vcc, -1
    s_cbranch_scc1 {L('ok')}
    v_mov_b32 {v(T[6])}, 1
    v_mov_b32 {v(T[7])}, {LDS_FLAG}
    ds_write_b32 {v(T[7])}, {v(T[6])}""")
    g.label(L('ok'))
    g(f"""s_waitcnt lgkmcnt(0)
    buffer_store_dwordx4 {vr(R+8,4)}, {v(T[2])}, {sr(SWS,4)}, {s(s_t0)} offen{sfx}
    s_mov_b32 exec_hi, 0
    buffer_store_dwordx4 {vr(R+12,4)}, {v(T[2])}, {sr(SWS,4)}, {s(s_t0)} offen offset:1024{sfx}
    s_mov_b32 exec_hi, -1
    v_mov_b32 {v(T[7])}, {LDS_FLAG}""")
    if pre_publish: pre_publish()
    g(f"""s_waitcnt vmcnt(0)
    s_barrier
    ds_read_b32 {v(T[6])}, {v(T[7])}
    s_waitcnt lgkmcnt(0)
    v_readfirstlane_b32 {s(s_t2)}, {v(T[6])}
    s_xor_b32 {s(s_t1)}, {s(s_fb)}, 1
    s_nop 2
    s_and_b32 {s(s_t2)}, {s(s_t2)}, {s(s_t1)}
    s_cmp_lg_u32 {s(s_t2)}, 0
    s_cbranch_scc1 {L('fallback')}""")
    if publish_fn: publish_fn(s_head, s_qb)
    g(f"s_branch {L('att_done')}")
    g.label(L('fallback'))
    g(f"s_mov_b32 {s(s_fb)}, 1")
    back = (8 % NSLOT) * SLOT
    def rewind():
        for a in (aK, aR, aV): g(f"v_subrev_u32 {v(a)}, {back}, {v(a)}")
    rewind()
    g("s_barrier")
    dma_first2()
    for X in range(2): g(f"v_mov_b32 {v(M[X])}, 0xff800000")
    g(f"""s_mov_b32 {s(s_c)}, 0
    s_mov_b32 {s(s_slot)}, 0
    s_mov_b32 {s(s_dslot)}, {2*SLOT}
    s_waitcnt vmcnt(3)
    s_barrier""")
    def mx_body(tag, n):
        g.label(L('mxloop' + tag))
        for i in range(n):
            ldK(i * KVT)
            g("s_waitcnt lgkmcnt(0)")
            for X in range(2):
                qk16(X, X); qk8(X, X)
            g("s_nop 15\ns_nop 7")
            for X in range(2):
                for r in range(0, 16, 2): g(f"v_max3_f32 {v(M[X])}, {v(M[X])}, {v(Sx[X]+r)}, {v(Sx[X]+r+1)}")
        chunk_switch()
        g(f"""v_add_u32 {v(aV)}, {s(s_dlt)}, {v(aV)}
        s_add_u32 {s(s_c)}, {s(s_c)}, 1
        s_cmp_lt_u32 {s(s_c)}, 8
        s_cbranch_scc1 {L('mxloop' + tag)}""")
    if n0 == 4:
        mx_body("", 4)
    else:
        g(f"s_cmp_lg_u32 {s(s_kh)}, 0\ns_cbranch_scc1 {L('mgrp1')}")
        mx_body("a", n0)
        g(f"s_branch {L('mxend')}")
        g.label(L('mgrp1'))
        mx_body("b", 8 - n0)
        g.label(L('mxend'))
    rewind()
    for X in range(2):
        g(f"""v_mov_b32 {v(T[0])}, {v(M[X])}
        v_mov_b32 {v(T[1])}, {v(M[X])}
        s_nop 1
        v_permlane32_swap_b32 {v(T[0])}, {v(T[1])}
        s_nop 1
        v_max_f32 {v(M[X])}, {v(T[0])}, {v(T[1])}""")
    g(f"""s_lshl_b32 {s(s_t0)}, {s(s_w)}, 9
    v_lshlrev_b32 {v(T[0])}, 3, {v(v_lane)}
    v_add_u32 {v(T[1])}, {s(s_t0)}, {v(T[0])}
    s_xor_b32 {s(s_t1)}, {s(s_w)}, 4
    s_lshl_b32 {s(s_t1)}, {s(s_t1)}, 9
    v_add_u32 {v(T[2])}, {s(s_t1)}, {v(T[0])}
    s_waitcnt vmcnt(0)
    s_barrier
    ds_write_b64 {v(T[1])}, {vr(M[0],2)}
    s_waitcnt lgkmcnt(0)
    s_barrier
    ds_read_b64 {vr(T[4],2)}, {v(T[2])}
    s_waitcnt lgkmcnt(0)
    v_max_f32 {v(M[0])}, {v(M[0])}, {v(T[4])}
    v_max_f32 {v(M[1])}, {v(M[1])}, {v(T[5])}
    s_barrier""")
    g("s_mov_b32 exec_lo, 0")
    for X in range(2):
        g(f"""v_xor_b32 {v(T[0])}, 0x80000000, {v(M[X])}
        v_and_b32 {v(T[1])}, 0xffff0000, {v(T[0])}
        v_sub_f32 {v(T[0])}, {v(T[0])}, {v(T[1])}
        v_and_b32 {v(T[2])}, 0xffff0000, {v(T[0])}
        v_sub_f32 {v(T[0])}, {v(T[0])}, {v(T[2])}
        v_lshrrev_b32 {v(T[1])}, 16, {v(T[1])}
        v_or_b32 {v(Qr[X])}, {v(T[1])}, {v(T[2])}
        v_lshrrev_b32 {v(Qr[X]+1)}, 16, {v(T[0])}""")
    g("s_mov_b32 exec_lo, -1")
    dma_first2()
    g(f"s_branch {L('restart')}")
    g.label(L('att_done'))
    return dict(lds=ATT_LDS)

def gen_att3(g, name="att_kernel", stamps=False, **kw):
    L = lambda x: f"{name}_{x}"
    g.kernel_start(name)
    P = dict(SX=4, SG=8, SWS=12, s_id=2, s_w=18)
    st = None
    if stamps:
        def st(k): g(f"s_memtime s[{60+2*k}:{61+2*k}]\ns_waitcnt lgkmcnt(0)" if k else f"s_memtime s[{60+2*k}:{61+2*k}]")
        st(0)
    g(f"s_cmp_ge_u32 s2, 256\ns_cbranch_scc1 {L('exit')}")
    g.srd(4, "ax"); g.srd(8, "gw"); g.srd(12, "ws")
    g(f"""v_lshrrev_b32 v2, 6, v0
    v_and_b32 v1, 63, v0
    v_readfirstlane_b32 s18, v2
    s_waitcnt lgkmcnt(0)""")
    g.srd_fin(4, "ax"); g.srd_fin(8, "gw"); g.srd_fin(12, "ws")
    info = gen_att_role(g, L, P, stamps=st, **kw)
    if stamps:
        g("s_waitcnt vmcnt(0)"); st(4)
        g(f"""s_mov_b64 exec, 1
        s_lshl_b32 s38, s2, 3
        s_add_u32 s38, s38, s18
        s_lshl_b32 s38, s38, 5
        s_add_u32 s38, s38, {WS_STAMP}
        v_mov_b32 v1, 0""")
        for k in range(5): g(f"v_mov_b32 v{8+k}, s{60+2*k}")
        g("v_mov_b32 v13, s90\nv_mov_b32 v14, s91\nv_mov_b32 v15, s79")
        g("buffer_store_dwordx4 v[8:11], v1, s[12:15], s38 offen\nbuffer_store_dwordx4 v[12:15], v1, s[12:15], s38 offen offset:16")
    g.label(L('exit'))
    g("s_endpgm")
    g.kernel_end(name, 128)
    return info
```

```python
import fused
BEST = dict(two=True, prio_f=0, prio_fl=1, prio_f2=0, prio_att=1, att_kw=dict(dma_old=True, vmask=True, kstag=False, pair=True, n0=6, align='p6s4'), qkw=dict(warm=False, tlbpf=True, pair=True, st_sfx=' sc1', stagger=(10,1), pretouch=True, idlepf=True), fin_kw=dict(wo_pf=False), f1_kw=dict(setup_first=True), fin_early='loader')
def build(**over):
    kw = {k: (dict(v) if isinstance(v, dict) else v) for k, v in BEST.items()}
    kw.update(over)
    al = kw.pop("align_loops", True)
    t, l = fused.build(**kw)
    if al:
        import re
        t = re.sub(r"^(fk_1_f1cl|fk_f_f2cl|fk_f_f3cl|qkv_kernel_clk|qkv_kernel_clv):", r".p2align 6\n\1:", t, flags=re.M)
    return t, l
if __name__ == "__main__":
    import sys
    t, l = build()
    out = sys.argv[1] if len(sys.argv) > 1 else "gated_mix__mha_block__dense_activation_squared_relu__prompt.s"
    open(out, "w").write(t); print("wrote", out, l)
```

```python
from common2 import *

KVT = 2624
SLOT = 8 * KVT
NSLOT = 3
LDS_FLAG = NSLOT * SLOT
ATT_LDS = LDS_FLAG + 64
SEQ_DEFAULT = ["M1","e0","e1","e2","c0","e3","M2","LK","e4","c1","e5","e6","c2","M3","e7","e8","c3","e9","e10","M4","LV","c4","e11","e12","c5","e13","e14","c6","e15","nop","c7"]

def gen_att_role(g, L, P, sc1=False, sched=None, stamps=None, wait_fn=None, publish_fn=None, prio=None, prof=False, split=False, gate=True):
    SWS, SX, SG = P["SWS"], P["SX"], P["SG"]
    s_id, s_w = P["s_id"], P["s_w"]
    sfx = " sc1" if sc1 else ""
    s_head, s_qb, s_qg, s_kh, s_t0, s_t1, s_t2 = 40, 41, 42, 43, 44, 45, 46
    s_m0, s_c, s_dlt, s_slot, s_fb, s_dslot, s_cc = 47, 48, 49, 50, 51, 52, 53
    v_lane = 1; T = [2, 3, 4, 5, 6, 7, 8, 9]
    Qm = [10, 14]; Qr = [18, 20]
    Km, Kr, V0, V1 = 22, 26, 28, 32
    Pp = [36, 44]; Sx = [52, 68]; O = [84, 100]
    aK, aR, aV = 116, 117, 118
    vd = [119, 120, 121]
    M = [122, 123]
    SEQ = sched or SEQ_DEFAULT
    g(f"""s_and_b32 {s(s_t0)}, {s(s_id)}, 7
    s_lshl_b32 {s(s_t0)}, {s(s_t0)}, 2
    s_bfe_u32 {s(s_t1)}, {s(s_id)}, 0x20003
    s_add_u32 {s(s_head)}, {s(s_t0)}, {s(s_t1)}
    s_lshr_b32 {s(s_qb)}, {s(s_id)}, 5
    s_and_b32 {s(s_qg)}, {s(s_w)}, 3
    s_lshr_b32 {s(s_kh)}, {s(s_w)}, 2
    s_mul_i32 {s(s_m0)}, {s(s_w)}, {KVT}
    s_mov_b32 {s(s_fb)}, 0""")
    gx, gw_ = Sx[0], Sx[0] + 8
    if gate:
        g(f"""s_lshl_b32 {s(s_t0)}, {s(s_qb)}, 8
        s_lshl_b32 {s(s_t1)}, {s(s_head)}, 3
        s_add_u32 {s(s_t0)}, {s(s_t0)}, {s(s_t1)}
        s_add_u32 {s(s_t0)}, {s(s_t0)}, {s(s_w)}
        s_mul_i32 {s(s_t1)}, {s(s_t0)}, 1280
        s_lshl_b32 {s(s_t2)}, {s(s_t0)}, 2
        s_add_u32 {s(s_t2)}, {s(s_t2)}, {WS_G2}
        v_lshlrev_b32 {v(T[1])}, 5, {v(v_lane)}""")
        for i in range(16): g(f"v_mov_b32 {v(gx+i)}, 0")
        g(f"""s_mov_b32 exec_hi, 0xff
        buffer_load_dwordx4 {vr(gx,4)}, {v(T[1])}, {sr(SX,4)}, {s(s_t1)} offen
        buffer_load_dwordx4 {vr(gx+4,4)}, {v(T[1])}, {sr(SX,4)}, {s(s_t1)} offen offset:16
        buffer_load_dwordx4 {vr(gw_,4)}, {v(T[1])}, {sr(SG,4)}, 0 offen
        buffer_load_dwordx4 {vr(gw_+4,4)}, {v(T[1])}, {sr(SG,4)}, 0 offen offset:16
        s_mov_b32 exec_hi, -1""")
    g(f"""s_mul_i32 {s(s_t0)}, {s(s_head)}, 1280
    s_add_u32 {s(s_t0)}, {s(s_t0)}, {T_K}                    ; K base
    s_lshr_b32 {s(s_t1)}, {s(s_head)}, 3
    s_mul_i32 {s(s_t1)}, {s(s_t1)}, {V_GS}
    s_add_u32 {s(s_t1)}, {s(s_t1)}, {T_V}
    s_and_b32 {s(s_c)}, {s(s_head)}, 7
    s_mul_i32 {s(s_c)}, {s(s_c)}, 320                        ; 20*(head&7)*16
    v_lshlrev_b32 {v(vd[0])}, 4, {v(v_lane)}
    v_add_u32 {v(vd[0])}, {s(s_t0)}, {v(vd[0])}""")
    for j in (1, 2):
        g(f"""v_add_u32 {v(T[2])}, {64*j - 80}, {v(v_lane)}
        v_max_i32 {v(T[3])}, 0, {v(T[2])}
        v_mul_u32_u24 {v(T[4])}, 3121, {v(T[3])}
        v_lshrrev_b32 {v(T[4])}, 16, {v(T[4])}                ; uh = q/21
        v_mul_u32_u24 {v(T[5])}, 21, {v(T[4])}
        v_sub_u32 {v(T[5])}, {v(T[3])}, {v(T[5])}             ; d
        v_mul_u32_u24 {v(T[4])}, 2560, {v(T[4])}
        v_lshl_add_u32 {v(T[4])}, {v(T[5])}, 4, {v(T[4])}
        v_add_u32 {v(T[4])}, {s(s_c)}, {v(T[4])}
        v_cmp_eq_u32 vcc, 20, {v(T[5])}
        v_mov_b32 {v(T[6])}, 10240
        s_nop 0
        v_cndmask_b32 {v(T[4])}, {v(T[4])}, {v(T[6])}, vcc
        v_add_u32 {v(vd[j])}, {s(s_t1)}, {v(T[4])}""")
        if j == 1:
            g(f"""v_lshlrev_b32 {v(T[6])}, 4, {v(v_lane)}
            v_add_u32 {v(T[6])}, 1024, {v(T[6])}
            v_add_u32 {v(T[6])}, {s(s_t0)}, {v(T[6])}
            v_cmp_gt_i32 vcc, 0, {v(T[2])}
            s_nop 1
            v_cndmask_b32 {v(vd[1])}, {v(vd[1])}, {v(T[6])}, vcc""")
        g(f"v_subrev_u32 {v(vd[j])}, {1024*j}, {v(vd[j])}")
    g(f"""s_mul_i32 {s(s_t0)}, {s(s_kh)}, {4*KVT}
    v_lshlrev_b32 {v(aK)}, 4, {v(v_lane)}
    v_add_u32 {v(aK)}, {s(s_t0)}, {v(aK)}
    v_and_b32 {v(T[0])}, 31, {v(v_lane)}
    v_lshrrev_b32 {v(T[1])}, 5, {v(v_lane)}
    v_lshlrev_b32 {v(aR)}, 3, {v(T[0])}
    v_add_u32 {v(aR)}, 1024, {v(aR)}
    v_cmp_eq_u32 vcc, 1, {v(T[1])}
    v_mov_b32 {v(T[2])}, 1600
    s_nop 0
    v_cndmask_b32 {v(aR)}, {v(aR)}, {v(T[2])}, vcc
    v_add_u32 {v(aR)}, {s(s_t0)}, {v(aR)}
    v_min_u32 {v(T[2])}, 20, {v(T[0])}
    v_cmp_le_u32 vcc, 28, {v(T[0])}
    v_mul_u32_u24 {v(T[3])}, 21, {v(T[1])}
    s_nop 0
    v_cndmask_b32 {v(T[2])}, {v(T[2])}, 4, vcc
    v_add_u32 {v(T[2])}, {v(T[2])}, {v(T[3])}
    v_lshlrev_b32 {v(aV)}, 4, {v(T[2])}
    v_add_u32 {v(aV)}, {s(s_t0)}, {v(aV)}
    v_mov_b32 {v(T[4])}, 0
    v_mov_b32 {v(T[5])}, {LDS_FLAG}
    ds_write_b32 {v(T[5])}, {v(T[4])}""")
    if gate:
        acc = T[6]
        g(f"s_waitcnt vmcnt(0)\nv_mov_b32 {v(acc)}, 0")
        for i in range(8): g(f"v_dot2_f32_bf16 {v(acc)}, {v(gx+i)}, {v(gw_+i)}, {v(acc)}")
        g("s_nop 3")
        for dpp in ["row_shr:1", "row_shr:2", "row_shr:4", "row_shr:8", "row_bcast:15 row_mask:0xa", "row_bcast:31 row_mask:0xc"]:
            g(f"s_nop 1\nv_add_f32_dpp {v(acc)}, {v(acc)}, {v(acc)} {dpp} bank_mask:0xf" if "row_mask" in dpp else f"s_nop 1\nv_add_f32_dpp {v(acc)}, {v(acc)}, {v(acc)} {dpp} row_mask:0xf bank_mask:0xf bound_ctrl:0")
        g(f"""v_mul_f32 {v(acc)}, {f32hex(-1.4426950408889634)}, {v(acc)}
        v_exp_f32 {v(acc)}, {v(acc)}
        s_nop 0
        v_add_f32 {v(acc)}, 1.0, {v(acc)}
        v_rcp_f32 {v(acc)}, {v(acc)}
        v_mov_b32 {v(T[7])}, 0
        s_mov_b32 exec_lo, 0
        s_mov_b32 exec_hi, 0x80000000
        buffer_store_dword {v(acc)}, {v(T[7])}, {sr(SWS,4)}, {s(s_t2)} offen{sfx}
        s_mov_b64 exec, -1""")
    if wait_fn: wait_fn(s_head, s_qb)
    if stamps: stamps(1)
    def dma(s_chunk, s_lds):
        g(f"""s_lshl_b32 {s(s_t2)}, {s(s_chunk)}, 3
        s_add_u32 {s(s_t2)}, {s(s_t2)}, {s(s_w)}
        s_mul_i32 {s(s_t2)}, {s(s_t2)}, {TSG}
        s_mov_b32 m0, {s(s_lds)}
        s_add_u32 {s(s_t2)}, {s(s_t2)}, {WS_T}
        buffer_load_dwordx4 {v(vd[0])}, {sr(SWS,4)}, {s(s_t2)} offen{sfx} lds
        buffer_load_dwordx4 {v(vd[1])}, {sr(SWS,4)}, {s(s_t2)} offen offset:1024{sfx} lds
        s_mov_b32 exec_hi, 0xf
        buffer_load_dwordx4 {v(vd[2])}, {sr(SWS,4)}, {s(s_t2)} offen offset:2048{sfx} lds
        s_mov_b32 exec_hi, -1""")
    def next_cc():
        g(f"s_add_u32 {s(s_cc)}, {s(s_cc)}, 1\ns_and_b32 {s(s_cc)}, {s(s_cc)}, 7")
    def dma_first2():
        g(f"s_mov_b32 {s(s_cc)}, {s(s_qb)}\ns_mov_b32 {s(s_t1)}, {s(s_m0)}")
        dma(s_cc, s_t1); next_cc()
        g(f"s_add_u32 {s(s_t1)}, {s(s_t1)}, {SLOT}")
        dma(s_cc, s_t1); next_cc()
    g(f"""s_lshl_b32 {s(s_t1)}, {s(s_qb)}, 3
    s_lshl_b32 {s(s_t2)}, {s(s_qg)}, 1
    s_add_u32 {s(s_t1)}, {s(s_t1)}, {s(s_t2)}
    s_mul_i32 {s(s_t1)}, {s(s_t1)}, {TSG}
    s_mul_i32 {s(s_t0)}, {s(s_head)}, 1280
    s_add_u32 {s(s_t0)}, {s(s_t0)}, {s(s_t1)}
    s_add_u32 {s(s_t0)}, {s(s_t0)}, {WS_T + T_Q}
    s_add_u32 {s(s_t1)}, {s(s_t0)}, {TSG}
    v_lshlrev_b32 {v(T[0])}, 3, {v(v_lane)}
    v_lshlrev_b32 {v(T[1])}, 4, {v(v_lane)}""")
    for j in range(2): g(f"v_mov_b32 {v(Qr[j])}, 0\nv_mov_b32 {v(Qr[j]+1)}, 0")
    g(f"""buffer_load_dwordx4 {vr(Qm[0],4)}, {v(T[1])}, {sr(SWS,4)}, {s(s_t0)} offen{sfx}
    buffer_load_dwordx4 {vr(Qm[1],4)}, {v(T[1])}, {sr(SWS,4)}, {s(s_t1)} offen{sfx}
    s_mov_b32 exec_hi, 0
    buffer_load_dwordx2 {vr(Qr[0],2)}, {v(T[0])}, {sr(SWS,4)}, {s(s_t0)} offen offset:1024{sfx}
    buffer_load_dwordx2 {vr(Qr[1],2)}, {v(T[0])}, {sr(SWS,4)}, {s(s_t1)} offen offset:1024{sfx}
    s_mov_b32 exec_hi, -1""")
    dma_first2()

    def qk16(dst, X): g(f"v_mfma_f32_32x32x16_bf16 {vr(Sx[dst],16)}, {vr(Km,4)}, {vr(Qm[X],4)}, 0")
    def qk8(dst, X): g(f"v_mfma_f32_32x32x8_bf16 {vr(Sx[dst],16)}, {vr(Kr,2)}, {vr(Qr[X],2)}, {vr(Sx[dst],16)}")
    def pv(X, u): g(f"v_mfma_f32_32x32x16_bf16 {vr(O[X],16)}, {vr(V0 if u == 0 else V1,4)}, {vr(Pp[X]+4*u,4)}, {vr(O[X],16)}")
    def ldK(toff): g(f"ds_read_b128 {vr(Km,4)}, {v(aK)} offset:{toff}\nds_read_b64 {vr(Kr,2)}, {v(aR)} offset:{toff}")
    def ldV(toff): g(f"ds_read_b128 {vr(V0,4)}, {v(aV)} offset:{toff+1280}\nds_read_b128 {vr(V1,4)}, {v(aV)} offset:{toff+1280+672}")
    def e(X, r): g(f"v_exp_f32 {v(Sx[X]+r)}, {v(Sx[X]+r)}")
    def cv(X, k): g(f"v_cvt_pk_bf16_f32 {v(Pp[X]+k)}, {v(Sx[X]+2*k)}, {v(Sx[X]+2*k+1)}")
    cnt = [0]
    def chunk_switch():
        n = cnt[0]; cnt[0] += 1
        if prof: g("s_memtime s[84:85]")
        g("s_waitcnt vmcnt(0)")
        if prof: g("s_memtime s[86:87]")
        g("s_barrier")
        if prof: g("s_memtime s[88:89]\ns_waitcnt lgkmcnt(0)\ns_sub_u32 s86, s86, s84\ns_add_u32 s90, s90, s86\ns_sub_u32 s88, s88, s84\ns_add_u32 s91, s91, s88")
        g(f"""s_cmp_ge_u32 {s(s_c)}, 6
        s_cbranch_scc1 {L('nodma')}{n}
        s_add_u32 {s(s_t1)}, {s(s_dslot)}, {s(s_m0)}""")
        dma(s_cc, s_t1); next_cc()
        g.label(f"{L('nodma')}{n}")
        g(f"""s_add_u32 {s(s_dslot)}, {s(s_dslot)}, {SLOT}
        s_cmp_ge_u32 {s(s_dslot)}, {NSLOT*SLOT}
        s_cselect_b32 {s(s_dslot)}, 0, {s(s_dslot)}
        s_add_u32 {s(s_slot)}, {s(s_slot)}, {SLOT}
        s_cmp_ge_u32 {s(s_slot)}, {NSLOT*SLOT}
        s_cselect_b32 {s(s_slot)}, 0, {s(s_slot)}
        s_mov_b32 {s(s_dlt)}, {SLOT}
        s_cmov_b32 {s(s_dlt)}, {-(NSLOT-1)*SLOT}
        v_add_u32 {v(aK)}, {s(s_dlt)}, {v(aK)}
        v_add_u32 {v(aR)}, {s(s_dlt)}, {v(aR)}""")
    def phase(X, i):
        Y = 1 - X
        for op in SEQ:
            if op == "M1":
                if X == 1: g("s_waitcnt lgkmcnt(2)")
                qk16(Y, Y)
            elif op == "M2": qk8(Y, Y)
            elif op == "M3":
                if X == 1: g("s_waitcnt lgkmcnt(0)")
                pv(Y, 0)
            elif op == "M4": pv(Y, 1)
            elif op == "LK":
                if X == 0:
                    if i == 3: chunk_switch(); ldK(0)
                    else: ldK((i + 1) * KVT)
            elif op == "LV":
                if X == 0:
                    ldV(i * KVT)
                    if i == 3: g(f"v_add_u32 {v(aV)}, {s(s_dlt)}, {v(aV)}")
            elif op == "nop": g("s_nop 0")
            elif op[0] == "e": e(X, int(op[1:]))
            elif op[0] == "c": cv(X, int(op[1:]))
    if prof: g("s_mov_b32 s90, 0\ns_mov_b32 s91, 0")
    g.label(L('restart'))
    for X in range(2):
        for r in range(16): g(f"v_mov_b32 {v(O[X]+r)}, 0")
    for r in range(8): g(f"v_mov_b32 {v(Pp[1]+r)}, 0")
    for r in range(8): g(f"v_mov_b32 {v(V0+r)}, 0")
    g(f"""s_mov_b32 {s(s_c)}, 0
    s_mov_b32 {s(s_slot)}, 0
    s_mov_b32 {s(s_dslot)}, {2*SLOT}
    s_waitcnt vmcnt(3) lgkmcnt(0)
    s_barrier""")
    if stamps: stamps(2)
    ldK(0)
    g("s_waitcnt lgkmcnt(0)")
    qk16(0, 0); qk8(0, 0)
    g("s_nop 7\ns_nop 3")
    if prio is not None: g(f"s_setprio {prio}")
    if split:
        g(f"s_cmp_eq_u32 {s(s_kh)}, 0\ns_cbranch_scc1 {L('nosplit')}\ns_setprio {prio+2}")
        g.label(L('nosplit'))
    g.label(L('loop'))
    for i in range(4):
        phase(0, i); phase(1, i)
    g(f"""s_add_u32 {s(s_c)}, {s(s_c)}, 1
    s_cmp_lt_u32 {s(s_c)}, 8
    s_cbranch_scc1 {L('loop')}""")
    if stamps: stamps(3)
    g("s_nop 1")
    pv(1, 0); pv(1, 1)
    g(f"""s_mul_i32 {s(s_t0)}, {s(s_w)}, 3072
    v_lshlrev_b32 {v(T[0])}, 4, {v(v_lane)}
    v_add_u32 {v(T[1])}, {s(s_t0)}, {v(T[0])}
    s_xor_b32 {s(s_t1)}, {s(s_w)}, 4
    s_mul_i32 {s(s_t1)}, {s(s_t1)}, 3072
    v_add_u32 {v(T[2])}, {s(s_t1)}, {v(T[0])}
    s_barrier
    s_nop 7
    s_cmp_eq_u32 {s(s_kh)}, 0
    s_cbranch_scc1 {L('kh0')}""")
    for q in range(3): g(f"ds_write_b128 {v(T[1])}, {vr(O[0]+4*q,4)} offset:{q*1024}")
    for r in range(12): g(f"v_mov_b32 {v(O[0]+r)}, {v(O[1]+r)}")
    g(f"s_branch {L('sent')}")
    g.label(L('kh0'))
    g("s_nop 7")
    for q in range(3): g(f"ds_write_b128 {v(T[1])}, {vr(O[1]+4*q,4)} offset:{q*1024}")
    g.label(L('sent'))
    R = Sx[0]
    g("s_waitcnt lgkmcnt(0)\ns_barrier")
    for q in range(3): g(f"ds_read_b128 {vr(R+4*q,4)}, {v(T[2])} offset:{q*1024}")
    g("s_waitcnt lgkmcnt(0)")
    Fo = O[0]
    for r in range(12): g(f"v_add_f32 {v(Fo+r)}, {v(Fo+r)}, {v(R+r)}")
    g(f"""v_mov_b32 {v(T[3])}, {v(Fo+8)}
    v_mov_b32 {v(T[4])}, {v(Fo+8)}
    s_nop 1
    v_permlane32_swap_b32 {v(T[3])}, {v(T[4])}
    s_nop 1
    v_rcp_f32 {v(T[5])}, {v(T[4])}
    v_mov_b32 {v(T[6])}, 0""")
    for r in range(12): g(f"v_mul_f32 {v(Fo+r)}, {v(Fo+r)}, {v(T[5])}")
    for r in range(12): g(f"v_fma_f32 {v(T[6])}, {v(Fo+r)}, 0, {v(T[6])}")
    g(f"""v_cmp_o_f32 vcc, {v(T[6])}, {v(T[6])}
    s_mov_b32 {s(s_t0)}, 0x21800000
    v_cmp_lt_f32 s[54:55], {s(s_t0)}, {v(T[4])}
    s_mov_b32 {s(s_t0)}, 0x5d800000
    v_cmp_gt_f32 s[56:57], {s(s_t0)}, {v(T[4])}
    s_nop 1
    s_and_b64 vcc, vcc, s[54:55]
    s_and_b64 vcc, vcc, s[56:57]
    s_cmp_eq_u64 vcc, -1
    s_cbranch_scc1 {L('ok')}
    v_mov_b32 {v(T[6])}, 1
    v_mov_b32 {v(T[7])}, {LDS_FLAG}
    ds_write_b32 {v(T[7])}, {v(T[6])}""")
    g.label(L('ok'))
    g(f"""s_mov_b32 exec_lo, 0
    v_mov_b32 {v(Fo+8)}, 0
    v_mov_b32 {v(Fo+9)}, 0
    v_mov_b32 {v(Fo+10)}, 0
    v_mov_b32 {v(Fo+11)}, 0
    s_mov_b32 exec_lo, -1""")
    for q in range(3):
        g(f"v_cvt_pk_bf16_f32 {v(R+2*q)}, {v(Fo+4*q)}, {v(Fo+4*q+1)}\nv_cvt_pk_bf16_f32 {v(R+2*q+1)}, {v(Fo+4*q+2)}, {v(Fo+4*q+3)}")
    g(f"""v_and_b32 {v(T[0])}, 31, {v(v_lane)}
    v_mul_u32_u24 {v(T[0])}, 48, {v(T[0])}
    v_lshrrev_b32 {v(T[1])}, 5, {v(v_lane)}
    v_lshl_add_u32 {v(T[0])}, {v(T[1])}, 3, {v(T[0])}
    s_lshl_b32 {s(s_t0)}, {s(s_w)}, 11
    s_add_u32 {s(s_t0)}, {s(s_t0)}, 32768
    v_add_u32 {v(T[0])}, {s(s_t0)}, {v(T[0])}
    v_lshlrev_b32 {v(T[2])}, 4, {v(v_lane)}
    v_add_u32 {v(T[1])}, {s(s_t0)}, {v(T[2])}
    ds_write_b64 {v(T[0])}, {vr(R,2)}
    ds_write_b64 {v(T[0])}, {vr(R+2,2)} offset:16
    ds_write_b64 {v(T[0])}, {vr(R+4,2)} offset:32
    v_mov_b32 {v(T[7])}, {LDS_FLAG}
    s_waitcnt lgkmcnt(0)
    s_barrier
    ds_read_b32 {v(T[6])}, {v(T[7])}
    ds_read_b128 {vr(R+8,4)}, {v(T[1])}
    ds_read_b128 {vr(R+12,4)}, {v(T[1])} offset:1024
    s_lshl_b32 {s(s_t0)}, {s(s_qb)}, 8
    s_lshl_b32 {s(s_t1)}, {s(s_qg)}, 6
    s_add_u32 {s(s_t0)}, {s(s_t0)}, {s(s_t1)}
    s_lshl_b32 {s(s_t1)}, {s(s_kh)}, 5
    s_add_u32 {s(s_t0)}, {s(s_t0)}, {s(s_t1)}
    s_mul_i32 {s(s_t0)}, {s(s_t0)}, 48
    s_mul_i32 {s(s_t1)}, {s(s_head)}, {O_HS}
    s_add_u32 {s(s_t0)}, {s(s_t0)}, {s(s_t1)}
    s_add_u32 {s(s_t0)}, {s(s_t0)}, {WS_O2}
    s_waitcnt lgkmcnt(0)
    v_readfirstlane_b32 {s(s_t2)}, {v(T[6])}
    s_xor_b32 {s(s_t1)}, {s(s_fb)}, 1
    s_nop 2
    s_and_b32 {s(s_t2)}, {s(s_t2)}, {s(s_t1)}
    s_cmp_lg_u32 {s(s_t2)}, 0
    s_cbranch_scc1 {L('fallback')}
    buffer_store_dwordx4 {vr(R+8,4)}, {v(T[2])}, {sr(SWS,4)}, {s(s_t0)} offen{sfx}
    s_mov_b32 exec_hi, 0
    buffer_store_dwordx4 {vr(R+12,4)}, {v(T[2])}, {sr(SWS,4)}, {s(s_t0)} offen offset:1024{sfx}
    s_mov_b32 exec_hi, -1""")
    if publish_fn: publish_fn(s_head, s_qb)
    g(f"s_branch {L('att_done')}")
    g.label(L('fallback'))
    g(f"s_mov_b32 {s(s_fb)}, 1")
    back = (8 % NSLOT) * SLOT
    def rewind():
        for a in (aK, aR, aV): g(f"v_subrev_u32 {v(a)}, {back}, {v(a)}")
    rewind()
    g("s_barrier")
    dma_first2()
    for X in range(2): g(f"v_mov_b32 {v(M[X])}, 0xff800000")
    g(f"""s_mov_b32 {s(s_c)}, 0
    s_mov_b32 {s(s_slot)}, 0
    s_mov_b32 {s(s_dslot)}, {2*SLOT}
    s_waitcnt vmcnt(3)
    s_barrier""")
    g.label(L('mxloop'))
    for i in range(4):
        ldK(i * KVT)
        g("s_waitcnt lgkmcnt(0)")
        for X in range(2):
            qk16(X, X); qk8(X, X)
        g("s_nop 15\ns_nop 7")
        for X in range(2):
            for r in range(0, 16, 2): g(f"v_max3_f32 {v(M[X])}, {v(M[X])}, {v(Sx[X]+r)}, {v(Sx[X]+r+1)}")
    chunk_switch()
    g(f"""v_add_u32 {v(aV)}, {s(s_dlt)}, {v(aV)}
    s_add_u32 {s(s_c)}, {s(s_c)}, 1
    s_cmp_lt_u32 {s(s_c)}, 8
    s_cbranch_scc1 {L('mxloop')}""")
    rewind()
    for X in range(2):
        g(f"""v_mov_b32 {v(T[0])}, {v(M[X])}
        v_mov_b32 {v(T[1])}, {v(M[X])}
        s_nop 1
        v_permlane32_swap_b32 {v(T[0])}, {v(T[1])}
        s_nop 1
        v_max_f32 {v(M[X])}, {v(T[0])}, {v(T[1])}""")
    g(f"""s_lshl_b32 {s(s_t0)}, {s(s_w)}, 9
    v_lshlrev_b32 {v(T[0])}, 3, {v(v_lane)}
    v_add_u32 {v(T[1])}, {s(s_t0)}, {v(T[0])}
    s_xor_b32 {s(s_t1)}, {s(s_w)}, 4
    s_lshl_b32 {s(s_t1)}, {s(s_t1)}, 9
    v_add_u32 {v(T[2])}, {s(s_t1)}, {v(T[0])}
    s_waitcnt vmcnt(0)
    s_barrier
    ds_write_b64 {v(T[1])}, {vr(M[0],2)}
    s_waitcnt lgkmcnt(0)
    s_barrier
    ds_read_b64 {vr(T[4],2)}, {v(T[2])}
    s_waitcnt lgkmcnt(0)
    v_max_f32 {v(M[0])}, {v(M[0])}, {v(T[4])}
    v_max_f32 {v(M[1])}, {v(M[1])}, {v(T[5])}
    s_barrier""")
    g("s_mov_b32 exec_lo, 0")
    for X in range(2):
        g(f"""v_xor_b32 {v(T[0])}, 0x80000000, {v(M[X])}
        v_and_b32 {v(T[1])}, 0xffff0000, {v(T[0])}
        v_sub_f32 {v(T[0])}, {v(T[0])}, {v(T[1])}
        v_and_b32 {v(T[2])}, 0xffff0000, {v(T[0])}
        v_sub_f32 {v(T[0])}, {v(T[0])}, {v(T[2])}
        v_lshrrev_b32 {v(T[1])}, 16, {v(T[1])}
        v_or_b32 {v(Qr[X])}, {v(T[1])}, {v(T[2])}
        v_lshrrev_b32 {v(Qr[X]+1)}, 16, {v(T[0])}""")
    g("s_mov_b32 exec_lo, -1")
    dma_first2()
    g(f"s_branch {L('restart')}")
    g.label(L('att_done'))
    return dict(lds=ATT_LDS)

def gen_att3(g, name="att_kernel", stamps=False, **kw):
    L = lambda x: f"{name}_{x}"
    g.kernel_start(name)
    P = dict(SX=4, SG=8, SWS=12, s_id=2, s_w=18)
    st = None
    if stamps:
        def st(k): g(f"s_memtime s[{60+2*k}:{61+2*k}]\ns_waitcnt lgkmcnt(0)" if k else f"s_memtime s[{60+2*k}:{61+2*k}]")
        st(0)
    g(f"s_cmp_ge_u32 s2, 256\ns_cbranch_scc1 {L('exit')}")
    g.srd(4, "ax"); g.srd(8, "gw"); g.srd(12, "ws")
    g(f"""v_lshrrev_b32 v2, 6, v0
    v_and_b32 v1, 63, v0
    v_readfirstlane_b32 s18, v2
    s_waitcnt lgkmcnt(0)""")
    g.srd_fin(4, "ax"); g.srd_fin(8, "gw"); g.srd_fin(12, "ws")
    info = gen_att_role(g, L, P, stamps=st, **kw)
    if stamps:
        g("s_waitcnt vmcnt(0)"); st(4)
        g(f"""s_mov_b64 exec, 1
        s_lshl_b32 s38, s2, 3
        s_add_u32 s38, s38, s18
        s_lshl_b32 s38, s38, 5
        s_add_u32 s38, s38, {WS_STAMP}
        v_mov_b32 v1, 0""")
        for k in range(5): g(f"v_mov_b32 v{8+k}, s{60+2*k}")
        g("buffer_store_dwordx4 v[8:11], v1, s[12:15], s38 offen\nbuffer_store_dwordx4 v[12:15], v1, s[12:15], s38 offen offset:16")
    g.label(L('exit'))
    g("s_endpgm")
    g.kernel_end(name, 128)
    return info
```

```python
from dev import *
from r_qkv import *
from r_att import *
scale = float(sys.argv[1]) if len(sys.argv) > 1 and sys.argv[1] != "asm" else 1.0
g = Gen(); g.raw('.amdgcn_target "amdgcn-amd-amdhsa--gfx950"\n.text')
i1 = gen_qkv3(g); i2 = gen_att3(g, stamps=True)
import r_att_v1
B_ = dict(dma_old=True, vmask=True, kstag=False)
LATE = ["e0","e1","M1","e2","e3","c0","e4","c1","M2","LK","e5","e6","c2","e7","M3","e8","c3","e9","e10","c4","M4","LV","e11","e12","c5","e13","e14","c6","e15","nop","c7"]
EVEN = ["M1","e0","e1","e2","c0","e3","M2","LK","e4","c1","e5","e6","c2","M3","e7","e8","c3","e9","e10","M4","LV","c4","e11","e12","c5","e13","e14","c6","e15","nop","c7"]
LATE2 = ["e0","e1","e2","M1","e3","c0","e4","e5","c1","M2","LK","e6","e7","c2","e8","M3","e9","c3","e10","e11","c4","M4","LV","e12","e13","c5","e14","e15","nop","c6","c7"]
LATE3 = ["e0","e1","M1","e2","e3","c0","e4","e5","M2","LK","c1","e6","e7","c2","e8","M3","e9","c3","e10","e11","M4","LV","c4","e12","e13","c5","e14","e15","nop","c6","c7"]
N_ = dict(dma_old=True, vmask=False, kstag=False, n0=6, dma_grp=1)
M_ = dict(dma_old=True, vmask=True, kstag=False, n0=6)
VAR = {"p6": dict(M_, align="p6"), "p6s4": dict(M_, align="p6s4"), "p6fix": dict(M_, align="p6"), "p6s4fix": dict(M_, align="p6s4")}
for k_, kw_ in VAR.items(): gen_att3(g, name="att_" + k_, stamps=True, **kw_)
r_att_v1.gen_att3(g, name="att_v1", stamps=True)
import align8
TXT = g.text()
TXT, a_, b_ = align8.fix(TXT, r"^(att_p6fix_loop[ab]?):", None, off0=0); print("fix", a_, b_)
TXT, a_, b_ = align8.fix(TXT, r"^(att_p6s4fix_loop[ab]?):", None, off0=4); print("fix", a_, b_)
co = assemble(TXT, ["qkv_kernel", "att_kernel", "att_v1"] + ["att_" + k_ for k_ in VAR], 96)
if len(sys.argv) > 1 and sys.argv[1] == "asm": print("ASM OK"); sys.exit(0)
inp = make_inputs(0, scale_qk=scale)
dev = Dev(inp)
m = Module(co)
dev.ws.memset(0xff, 0x2000000)
m.launch("qkv_kernel", (256,1,1), (512,1,1), dev.ptrs(), lds=i1["lds"]); sync()
m.launch("att_kernel", (256,1,1), (512,1,1), dev.ptrs(), lds=i2["lds"]); sync()
x = inp["ax"][0].float(); w = inp["wqkv"].float()
qkv = (x @ w).to(torch.bfloat16).float()
q = qkv[:, :640].reshape(S, H, DH).permute(1,0,2); k = qkv[:, 640:1280].reshape(S, H, DH).permute(1,0,2); vv = qkv[:, 1280:].reshape(S, H, DH).permute(1,0,2)
sc = torch.einsum("hqd,hkd->hqk", q.double(), k.double()) * (DH ** -0.5)
p = torch.softmax(sc, dim=-1)
o = torch.einsum("hqk,hkd->hqd", p, vv.double()).numpy()
O = bf2f(dev.wsread(WS_O2, H*O_HS, np.uint16)).reshape(H, S, 24)
err("O", O[:, :, :20], o); print("pad zero:", np.all(O[:, :, 20:] == 0))
gt = torch.sigmoid((x * inp["gw"].float()).sum(-1)).numpy()
err("gate", dev.wsread(WS_G2, S*4, np.float32), gt)
for kn in ["att_v1"] + ["att_" + k_ for k_ in VAR]:
    t = Timer()
    for rep in range(2):
        for _ in range(3): m.launch(kn, (256,1,1), (512,1,1), dev.ptrs(), lds=i2["lds"])
        sync()
    t.start()
    for _ in range(10): m.launch(kn, (256,1,1), (512,1,1), dev.ptrs(), lds=i2["lds"])
    us = t.stop()/10
    O = bf2f(dev.wsread(WS_O2, H*O_HS, np.uint16)).reshape(H, S, 24)
    T = dev.wsread(WS_STAMP, 256*8*32, np.uint32).reshape(256, 8, 8).astype(np.int64)[:, :, :5]
    d = np.diff(T, axis=2) & 0xffffffff
    TT = dev.wsread(WS_STAMP, 256*8*32, np.uint32).reshape(256, 8, 8).astype(np.int64)
    if False: print("   kh0: vmcnt %d sync %d dma %d | kh1: vmcnt %d sync %d dma %d" % (TT[:,:4,5].mean(), TT[:,:4,6].mean(), TT[:,:4,7].mean(), TT[:,4:,5].mean(), TT[:,4:,6].mean(), TT[:,4:,7].mean()))
    if False: print("   loop kh0 %d kh1 %d" % (d[:,:4,2].mean(), d[:,4:,2].mean()))
    print("loop max %d min %d" % (d[:,:,2].max(axis=1).mean(), d[:,:,2].min(axis=1).mean()), end=" | ")
    print("%-14s pre-wait %d | Q+DMA->B0 %d | loop %d | epilogue %d | total %d | %.2f us/launch | maxerr %.4f" % ((kn,) + tuple(d.mean(axis=(0,1))) + (d.sum(axis=2).mean(), us, np.abs(O[:,:,:20]-o).max())))
```
